```python
import torch

def _softmax(x, axis=-1):
    return torch.softmax(x, dim=axis)

def _gelu(x):
    return torch.nn.functional.gelu(x, approximate='tanh')

def _silu(x):
    return torch.nn.functional.silu(x)

def _sigmoid(x):
    return torch.sigmoid(x)

def _layernorm(x, axis=-1, eps=1e-05):
    m = x.mean(dim=axis, keepdim=True)
    v = x.var(dim=axis, keepdim=True, unbiased=False)
    return (x - m) / torch.sqrt(v + eps)

def _scatter_add(tgt, idx, src, axis=0):
    return tgt.clone().index_add_(axis, idx, src)

def _segment_sum(src, seg, n):
    out = torch.zeros((n,) + src.shape[1:], dtype=src.dtype)
    return out.index_add_(0, seg, src)

def _pad(x, pw):
    flat = tuple((v for pair in reversed(pw) for v in pair))
    return torch.nn.functional.pad(x, flat)
kernel_name = 'adaLN_cond__mha_block__mixer_gmlp__prompt'

def setup_inputs():

    _w = lambda a: (lambda t: t.to(torch.bfloat16) if t.is_floating_point() else t)(torch.as_tensor(a))

    def _A_setup():
        B, S, D, H = (1, 2048, 512, 32)
        return {'x': _w((lambda *s: torch.randn(*s, dtype=torch.bfloat16) * 0.05)(B, S, D)), 'wqkv': _w((lambda *s: torch.randn(*s, dtype=torch.bfloat16) * 0.05)(D, 3 * D)), 'wo': _w((lambda *s: torch.randn(*s, dtype=torch.bfloat16) * 0.05)(D, D))}
    _A_in = _A_setup()

    def _B_setup():
        B, S, D, F = (1, 2048, 512, 1792)
        Fh = F // 2
        return {'x': _w((lambda *s: torch.randn(*s, dtype=torch.bfloat16) * 0.05)(B, S, D)), 'w_in': _w((lambda *s: torch.randn(*s, dtype=torch.bfloat16) * 0.4)(D, 2 * Fh)), 'w_sp': _w(0.01 * (lambda *s: torch.randn(*s, dtype=torch.bfloat16) * 0.4)(S, S)), 'b_sp': _w(1.0 + 0.01 * (lambda *s: torch.randn(*s, dtype=torch.bfloat16) * 0.05)(S)), 'w_out': _w((lambda *s: torch.randn(*s, dtype=torch.bfloat16) * 0.05)(Fh, D))}
    _B_in = _B_setup()
    return {'A_x': _A_in['x'], 'A_wqkv': _A_in['wqkv'], 'A_wo': _A_in['wo'], 'B_x': _B_in['x'], 'B_w_in': _B_in['w_in'], 'B_w_sp': _B_in['w_sp'], 'B_b_sp': _B_in['b_sp'], 'B_w_out': _B_in['w_out'], 'c': _w((lambda *s: torch.randn(*s, dtype=torch.bfloat16) * 0.1)(1, 512) * 8.0), 'w_mod': _w((lambda *s: torch.randn(*s, dtype=torch.bfloat16) * 0.1)(512, 6 * 512) * 512 ** (-0.5) * 8.0)}

def reference(A_x, A_wqkv, A_wo, B_x, B_w_in, B_w_sp, B_b_sp, B_w_out, c, w_mod):

    def _A_ref(x, wqkv, wo):
        B, S, D = x.shape
        H = 32
        Dh = D // H
        qkv = (lambda x, *d: x.permute(*d))((x @ wqkv).reshape(B, S, 3, H, Dh), 2, 0, 3, 1, 4)
        q, k, v = (qkv[0], qkv[1], qkv[2])
        scores = torch.einsum('bhqd,bhkd->bhqk', q, k) * Dh ** (-0.5)
        p = _softmax(scores, axis=-1)
        o = torch.einsum('bhqk,bhkd->bhqd', p, v)
        return (lambda x, *d: x.permute(*d))(o, 0, 2, 1, 3).reshape(B, S, D) @ wo

    def _B_ref(x, w_in, w_sp, b_sp, w_out):
        B, S, D = x.shape
        F = w_in.shape[-1]
        Fh = F // 2
        z = _gelu(torch.einsum('bsd,df->bsf', x, w_in))
        z1 = z[..., :Fh].clone()
        z2 = _layernorm(z[..., Fh:], axis=-1)
        g = torch.einsum('ts,bsf->btf', w_sp, z2) + b_sp[None, :, None]
        return torch.einsum('bsf,fd->bsd', z1 * g, w_out)
    x = A_x
    mod = (_silu(c) @ w_mod).reshape(c.shape[0], 6, 1, -1)
    sa, ca, ga, sb, cb, gb = (mod[:, 0].clone(), mod[:, 1].clone(), mod[:, 2].clone(), mod[:, 3].clone(), mod[:, 4].clone(), mod[:, 5].clone())
    h = _layernorm(x, axis=-1) * (1 + ca) + sa
    x = x + ga * _A_ref(h, A_wqkv, A_wo)
    h = _layernorm(x, axis=-1) * (1 + cb) + sb
    x = x + gb * _B_ref(h, B_w_in, B_w_sp, B_b_sp, B_w_out)
    return x
```

```python
import re
TRANS = ('v_exp_f32','v_log_f32','v_rcp_f32','v_rsq_f32','v_sqrt_f32','v_sin_f32','v_cos_f32')
def regs(op):
    op = op.strip()
    neg = op.lstrip('-|').rstrip('|')
    m = re.fullmatch(r'([vs])\[(\d+):(\d+)\]', neg)
    if m: return {(m.group(1), i) for i in range(int(m.group(2)), int(m.group(3))+1)}
    m = re.fullmatch(r'([vs])(\d+)', neg)
    if m: return {(m.group(1), int(m.group(2)))}
    if neg == 'vcc': return {('s','vcc')}
    if neg in ('vcc_lo','vcc_hi'): return {('s','vcc')}
    if neg == 'exec': return {('s','exec')}
    if neg == 'm0': return {('s','m0')}
    return set()
class Ins:
    __slots__=('text','mn','cls','w','r','ws','extra')
    def __init__(s, text):
        s.text = text
        t = text.split(';')[0].strip()
        p = t.split(None, 1)
        mn = p[0]; s.mn = mn; s.ws = 1; s.extra = {}
        rest = p[1] if len(p) > 1 else ''
        ops = [o.strip() for o in rest.split(',')] if rest else []
        mods = ''
        if ops:
            q = ops[-1].split(None, 1)
            ops[-1] = q[0]
            mods = q[1] if len(q) > 1 else ''
        allmods = rest
        mo = re.search(r'offset:(\d+)', allmods)
        if mo:
            assert int(mo.group(1)) <= (4095 if mn.startswith('buffer_') or mn.startswith('global_') else 65535), text
        R = [regs(o) for o in ops]
        U = lambda L: set().union(*L) if L else set()
        s.w = set(); s.r = set()
        if mn == 's_nop':
            s.cls = 'nop'; s.ws = int(ops[0], 0) + 1
        elif mn.startswith('v_mfma'):
            s.cls = 'mfma'; s.w = R[0]; s.r = U(R[1:])
            s.extra = dict(A=R[1], B=R[2], C=R[3], np=8 if '32x32' in mn else 4)
        elif mn.startswith('v_'):
            s.cls = 'valu'
            if mn.startswith('v_permlane') and 'swap' in mn:
                s.w = U(R[:2]); s.r = U(R[:2]); s.extra['perm'] = 1
            elif mn.startswith('v_cmp'):
                s.w = R[0]; s.r = U(R[1:])
            elif mn.startswith('v_readlane') or mn.startswith('v_readfirstlane'):
                s.w = R[0]; s.r = U(R[1:]); s.extra['rl'] = 1
            else:
                s.w = R[0]; s.r = U(R[1:])
                if mn.startswith('v_cndmask') and len(ops) == 3: s.r |= {('s','vcc')}
                if mn in ('v_fmac_f32','v_dot2c_f32_bf16','v_pk_fmac_f32','v_writelane_b32') : s.r |= R[0]
            if mn.replace('_e32','').replace('_e64','') in TRANS: s.extra['trans'] = 1
            if 'dpp' in mn or 'quad_perm' in allmods or 'row_' in allmods: s.extra['dpp'] = 1; s.r |= (R[0] if 'bound_ctrl' not in allmods else set())
            if 'dst_sel' in allmods or 'op_sel' in allmods: s.extra['opsel'] = 1
        elif mn.startswith('ds_'):
            s.cls = 'ds'
            if 'read' in mn or 'bpermute' in mn or 'swizzle' in mn or 'rtn' in mn: s.w = R[0]; s.r = U(R[1:])
            else: s.r = U(R)
        elif mn.startswith('buffer_') or mn.startswith('global_'):
            s.cls = 'vmem'
            lds = re.search(r'\blds\b', allmods) is not None
            if lds: s.r = U(R) | {('s','m0')}; s.extra['lds'] = 1
            elif 'load' in mn: s.w = R[0]; s.r = U(R[1:])
            elif 'atomic' in mn and re.search(r'\bsc0\b', allmods): s.w = R[0]; s.r = U(R)
            else:
                s.r = U(R)
                if 'x4' in mn or 'x3' in mn: s.extra['wide'] = R[0] if mn.startswith('buffer_') else R[1]
        elif mn.startswith('s_'):
            s.cls = 'salu'
            if mn.startswith('s_cmp') or mn.startswith('s_cbranch') or mn in ('s_branch','s_barrier','s_waitcnt','s_endpgm','s_setprio','s_sleep'):
                s.r = U(R)
            else:
                s.w = R[0] if R else set(); s.r = U(R[1:])
                if 'saveexec' in mn: s.w = s.w | {('s','exec')}
        else:
            raise ValueError(text)
def V(S): return {x for x in S if x[0] == 'v'}
def Sg(S): return {x for x in S if x[0] == 's'}
def required(p, c):
    n = 0
    pv = V(p.w)
    if p.cls == 'valu':
        if c.cls == 'mfma' and pv & V(c.r): n = max(n, 2)
        if c.cls == 'valu':
            if p.extra.get('trans') and not c.extra.get('trans') and pv & V(c.r): n = max(n, 1)
            if c.extra.get('perm') and pv & V(c.r): n = max(n, 2)
            if c.extra.get('dpp') and pv & V(c.r): n = max(n, 2)
            if c.extra.get('rl') and pv & V(c.r): n = max(n, 1)
            if p.extra.get('opsel') and pv & (V(c.r) | V(c.w)): n = max(n, 1)
            if Sg(p.w) & Sg(c.r): n = max(n, 4 if c.extra.get('rl') else 2)
        if c.cls == 'vmem' and Sg(p.w) & Sg(c.r): n = max(n, 5)
        if c.cls == 'salu' and Sg(p.w) & Sg(c.r): n = max(n, 1)
        if p.extra.get('trans') and c.cls in ('ds','vmem') and pv & V(c.r): n = max(n, 1)
    if p.cls == 'mfma':
        np_ = p.extra['np']
        big = {4: 8, 8: 12}[np_]
        if c.cls == 'mfma':
            if pv & (c.extra['A'] | c.extra['B']): n = max(n, big)
            if pv & c.extra['C']:
                if not (c.extra['C'] == p.w and c.extra['np'] == np_): n = max(n, {4: 6, 8: 10}[np_])
            if pv & c.w and not (c.extra['C'] == p.w == c.w): n = max(n, {4: 6, 8: 10}[np_])
        elif c.cls in ('valu','ds','vmem'):
            if pv & (V(c.r) | V(c.w)): n = max(n, big)
            if c.cls == 'valu' and V(p.extra['C']) & V(c.w): n = max(n, {4: 3, 8: 7}[np_])
            if c.cls in ('ds','vmem') and V(p.extra['C']) & V(c.w): n = max(n, {4: 3, 8: 7}[np_])
    if p.cls == 'vmem' and p.extra.get('wide') and c.cls == 'valu' and p.extra['wide'] & V(c.w): n = max(n, 2)
    if p.cls == 'salu' and ('s','m0') in p.w and c.extra.get('lds'): n = max(n, 1)
    return n
WIN = 24
def fix_hazards(lines):
    out = []; hist = []
    labels = {}; pend = {}
    alts = []
    parsed = []
    for ln in lines:
        t = ln.split(';')[0].strip()
        if not t or t.startswith('.') and not t.endswith(':'): parsed.append((ln, None)); continue
        if t.endswith(':'): parsed.append((ln, 'label')); continue
        parsed.append((ln, Ins(ln)))
    def need(win, c):
        d = 0; k = 0
        for p in reversed(win):
            r = required(p, c)
            if r - d > k: k = r - d
            d += p.ws
            if d >= WIN: break
        return k
    labpos = {ln.strip()[:-1]: i for i, (ln, x) in enumerate(parsed) if x == 'label'}
    nn = 0
    for i, (ln, x) in enumerate(parsed):
        if x is None: out.append(ln); continue
        if x == 'label':
            out.append(ln); l = ln.strip()[:-1]
            for w in pend.pop(l, []): alts.append(list(w))
            continue
        k = need(hist, x)
        for w in alts: k = max(k, need(w, x))
        if x.mn.startswith('s_cbranch') or x.mn == 's_branch':
            tgt = x.text.split(';')[0].split()[1]
            if tgt in labpos and labpos[tgt] < i:
                head = [y for (_, y) in parsed[labpos[tgt]+1: labpos[tgt]+40] if isinstance(y, Ins)][:WIN]
                for kk in range(0, 20):
                    win = hist + ([Ins('s_nop %d' % (kk-1))] if kk else []) + [x]
                    ok = True; w2 = list(win)
                    for y in head:
                        if need(w2, y) > 0 and need(w2, y) > need(w2[len(win):], y): ok = False; break
                        w2.append(y)
                    if ok: break
                k = max(k, kk)
        while k > 0:
            q = min(k, 16); ni = Ins('s_nop %d' % (q-1)); out.append('    ' + ni.text); nn += 1
            hist.append(ni)
            for w in alts: w.append(ni)
            k -= q
        out.append(ln); hist.append(x)
        for w in alts: w.append(x)
        if x.mn.startswith('s_cbranch') or x.mn == 's_branch':
            tgt = x.text.split(';')[0].split()[1]
            if tgt in labpos and labpos[tgt] > i: pend.setdefault(tgt, []).append(hist[-WIN:])
            if x.mn == 's_branch': hist = []
        if x.mn == 's_endpgm': hist = []; alts = []
        hist = hist[-WIN:]
        alts = [w[-WIN:] for w in alts if sum(p.ws for p in w[-WIN:]) < 10**9][-6:]
        if len(alts) and all(len(w) >= 2*WIN for w in alts): alts = []
    return out, nn
class Asm:
    def __init__(s): s.l = []; s.uid = 0
    def __call__(s, t):
        for x in t.split('\n'):
            x = x.strip()
            if x: s.l.append(x if x.endswith(':') else '    ' + x)
    def label(s, n): s.l.append(n + ':')
    def uniq(s, p): s.uid += 1; return '%s_%d' % (p, s.uid)
def vr(a, n=1): return 'v%d' % a if n == 1 else 'v[%d:%d]' % (a, a+n-1)
def sr(a, n=1): return 's%d' % a if n == 1 else 's[%d:%d]' % (a, a+n-1)
```

```python
import sys, struct
sys.path.insert(0, 'gen')
from asmlib import *
NAME = 'adaLN_cond__mha_block__mixer_gmlp__prompt'
MB = 1 << 20
WS_MOD = 0; WS_KMAX = 0x4000; WS_FLAG = 0x10000
WS_ST1 = 1*MB; WS_ST2 = WS_ST1 + 0x40000; WS_ST3 = WS_ST2 + 0x40000
WS_WIN = 2*MB; WS_Q = 4*MB; WS_K = 6*MB; WS_V = 8*MB; WS_O = 10*MB; WS_X1 = 12*MB
WS_Z2N = 14*MB; WS_Z1 = 18*MB; WS_U = 22*MB
P = dict(x=16, wqkv=18, wo=20, win=24, wsp=26, bsp=28, wout=30, c=32, wmod=34, out=36, dbg=38, ws=40)
SC = ''
def fbits(x): return '0x%08x' % struct.unpack('<I', struct.pack('<f', x))[0]
def prologue(a, nwg):
    a('s_load_dwordx16 s[16:31], s[0:1], 0\ns_load_dwordx8 s[32:39], s[0:1], 64\ns_load_dwordx2 s[40:41], s[0:1], 96')
    a('s_cmp_ge_u32 s2, %d' % nwg)
    e = a.uniq('go'); a('s_cbranch_scc0 %s\ns_endpgm' % e); a.label(e)
    a('v_and_b32 v1, 63, v0\nv_lshrrev_b32 v2, 6, v0\ns_nop 0\nv_readfirstlane_b32 s3, v2')
    a('s_waitcnt lgkmcnt(0)')
def srd(a, d, ptr, off, size):
    if off: a('s_add_u32 s%d, s%d, 0x%x\ns_addc_u32 s%d, s%d, 0' % (d, P[ptr], off, d+1, P[ptr]+1))
    else: a('s_mov_b32 s%d, s%d\ns_mov_b32 s%d, s%d' % (d, P[ptr], d+1, P[ptr]+1))
    a('s_mov_b32 s%d, 0x%x\ns_mov_b32 s%d, 0x00020000' % (d+2, size, d+3))
def unpack(a, dlo, dhi, src):
    a('v_lshlrev_b32 v%d, 16, v%d\nv_and_b32 v%d, 0xffff0000, v%d' % (dlo, src, dhi, src))
def red_xor16(a, r, t):
    a('v_mov_b32 v%d, v%d\nv_permlane16_swap_b32 v%d, v%d\nv_add_f32 v%d, v%d, v%d' % (t, r, r, t, r, r, t))
def red_xor32(a, r, t):
    a('v_mov_b32 v%d, v%d\nv_permlane32_swap_b32 v%d, v%d\nv_add_f32 v%d, v%d, v%d' % (t, r, r, t, r, r, t))
def dpp_add(a, r, mode, op='v_add_f32'):
    a('%s_dpp v%d, v%d, v%d %s row_mask:0xf bank_mask:0xf' % (op, r, r, r, mode))
QP1 = 'quad_perm:[1,0,3,2]'; QP2 = 'quad_perm:[2,3,0,1]'
def rnd_bf16(a, r, t=None):
    a('v_cvt_pk_bf16_f32 v%d, v%d, v%d\nv_lshlrev_b32 v%d, 16, v%d' % (r, r, r, r, r))

def k0(a):
    prologue(a, 256)
    a('s_cmp_lt_u32 s2, 64\ns_cbranch_scc0 k0_b')
    a('s_cmp_lt_u32 s2, 48\ns_cbranch_scc1 k0_mod')
    srd(a, 44, 'ws', WS_FLAG, 0x8000)
    a('s_sub_u32 s4, s2, 48\ns_lshl_b32 s4, s4, 11\nv_lshlrev_b32 v2, 2, v0\nv_mov_b32 v3, 0\nbuffer_store_dword v3, v2, s[44:47], s4 offen\ns_endpgm')
    a.label('k0_mod')
    srd(a, 44, 'wmod', 0, 512*6144); srd(a, 48, 'c', 0, 1024); srd(a, 52, 'ws', WS_MOD, 6*2048)
    a('v_lshrrev_b32 v2, 3, v0\nv_and_b32 v3, 7, v0\nv_mul_u32_u24 v4, 6144, v2\nv_lshl_add_u32 v4, v3, 4, v4\nv_lshlrev_b32 v5, 1, v2\ns_lshl_b32 s4, s2, 7')
    for i in range(8):
        a('s_add_u32 s5, s4, %d\nbuffer_load_dwordx4 v[%d:%d], v4, s[44:47], s5 offen' % (i*64*6144, 16+4*i, 19+4*i))
    for i in range(8):
        a('buffer_load_ushort v%d, v5, s[48:51], 0 offen offset:%d' % (8+i, i*128))
    a('s_waitcnt vmcnt(0)')
    for i in range(8):
        r = 8+i
        a('v_lshlrev_b32 v%d, 16, v%d\nv_mul_f32 v6, %s, v%d\nv_exp_f32 v6, v6\nv_add_f32 v6, 1.0, v6\nv_rcp_f32 v6, v6\nv_mul_f32 v%d, v%d, v6' % (r, r, fbits(-1.4426950408889634), r, r, r))
        rnd_bf16(a, r)
    for e in range(8): a('v_mov_b32 v%d, 0' % (48+e))
    for i in range(8):
        for q in range(4):
            unpack(a, 6, 7, 16+4*i+q)
            a('v_fmac_f32 v%d, v6, v%d\nv_fmac_f32 v%d, v7, v%d' % (48+2*q, 8+i, 49+2*q, 8+i))
    for e in range(8):
        dpp_add(a, 48+e, 'row_ror:8')
    for e in range(8): red_xor16(a, 48+e, 6)
    for e in range(8): red_xor32(a, 48+e, 6)
    a('v_lshlrev_b32 v6, 5, v3\ns_lshl_b32 s5, s3, 8\nv_add_u32 v6, s5, v6\nv_cmp_gt_u32 vcc, 8, v1\ns_and_saveexec_b64 s[6:7], vcc')
    a('ds_write_b128 v6, v[48:51]\nds_write_b128 v6, v[52:55] offset:16\ns_mov_b64 exec, s[6:7]\ns_waitcnt lgkmcnt(0)\ns_barrier')
    a('s_cmp_eq_u32 s3, 0\ns_cbranch_scc1 k0_mod2\ns_endpgm')
    a.label('k0_mod2')
    a('v_lshlrev_b32 v6, 2, v1')
    for i in range(8): a('ds_read_b32 v%d, v6 offset:%d' % (8+i, i*256))
    a('s_waitcnt lgkmcnt(0)')
    for i in range(1, 8): a('v_add_f32 v8, v8, v%d' % (8+i))
    rnd_bf16(a, 8)
    a('s_lshr_b32 s5, s2, 3\ns_cmp_eq_u32 s5, 1\ns_cbranch_scc1 k0_p1\ns_cmp_eq_u32 s5, 4\ns_cbranch_scc0 k0_st')
    a.label('k0_p1'); a('v_add_f32 v8, 1.0, v8'); rnd_bf16(a, 8)
    a.label('k0_st')
    a('s_lshl_b32 s5, s2, 8\nbuffer_store_dword v8, v6, s[52:55], s5 offen\ns_endpgm')
    a.label('k0_b')
    a('s_cmp_lt_u32 s2, 128\ns_cbranch_scc0 k0_c')
    srd(a, 44, 'x', 0, 2*MB); srd(a, 48, 'ws', WS_ST1, 0x40000)
    a('s_sub_u32 s4, s2, 64\ns_lshl_b32 s4, s4, 5\ns_lshl_b32 s5, s3, 2\ns_add_u32 s4, s4, s5\ns_lshl_b32 s5, s4, 10\nv_lshlrev_b32 v2, 4, v1')
    for i in range(4): a('buffer_load_dwordx4 v[%d:%d], v2, s[44:47], s5 offen offset:%d' % (8+4*i, 11+4*i, i*1024))
    a('v_lshrrev_b32 v3, 2, v1\nv_lshlrev_b32 v3, 3, v3\nv_and_b32 v4, 3, v1\ns_lshl_b32 s4, s4, 7')
    for i in range(4):
        a('s_waitcnt vmcnt(%d)' % (3-i))
        S, Q = 32+2*i, 33+2*i
        a('v_mov_b32 v%d, 0\nv_mov_b32 v%d, 0' % (S, Q))
        for q in range(4):
            unpack(a, 6, 7, 8+4*i+q)
            a('v_add_f32 v%d, v%d, v6\nv_fmac_f32 v%d, v6, v6\nv_add_f32 v%d, v%d, v7\nv_fmac_f32 v%d, v7, v7' % (S, S, Q, S, S, Q))
    for m in (QP1, QP2):
        for r in range(32, 40): dpp_add(a, r, m)
    a('v_cmp_eq_u32 vcc, 0, v4\ns_and_saveexec_b64 s[6:7], vcc')
    for i in range(4): a('buffer_store_dwordx2 v[%d:%d], v3, s[48:51], s4 offen offset:%d' % (32+2*i, 33+2*i, i*128))
    a('s_endpgm')
    a.label('k0_c')
    srd(a, 44, 'win', 0, 512*3584); srd(a, 48, 'ws', WS_WIN, 512*3584)
    a('s_sub_u32 s4, s2, 128\ns_lshl_b32 s4, s4, 9\nv_add_u32 v2, s4, v0\ns_mov_b32 s5, 0x24924925')
    for ps in range(2):
        n = 2
        if ps: a('v_add_u32 v2, 0x10000, v2')
        b = 10+10*ps
        a('v_lshrrev_b32 v3, 1, v%d\nv_mul_hi_u32 v3, v3, s5' % n)
        a('v_mul_u32_u24 v4, 14, v3\nv_sub_u32 v4, v%d, v4' % n)
        a('v_and_b32 v5, 511, v3')
        a('v_lshrrev_b32 v6, 1, v5\nv_and_b32 v6, 4, v6\nv_lshlrev_b32 v7, 1, v5\nv_and_b32 v7, 8, v7\nv_and_b32 v5, 0x1f3, v5\nv_or3_b32 v5, v5, v6, v7')
        a('v_bfe_u32 v6, v3, 9, 1\nv_xor_b32 v6, 1, v6\nv_mul_u32_u24 v6, 1792, v6')
        a('v_lshrrev_b32 v7, 10, v3\nv_mul_u32_u24 v7, 224, v7')
        a('v_mul_u32_u24 v5, 3584, v5\nv_add3_u32 v5, v5, v6, v7\nv_lshl_add_u32 v5, v4, 4, v5')
        a('v_cmp_gt_u32 vcc, 114688, v%d\nv_mov_b32 v6, 0x7fffffff\ns_nop 0\nv_cndmask_b32 v5, v6, v5, vcc' % n)
        a('buffer_load_dwordx4 v[%d:%d], v5, s[44:47], 0 offen\nv_lshlrev_b32 v%d, 4, v%d' % (b, b+3, b+4, n))
    a('s_waitcnt vmcnt(1)\nbuffer_store_dwordx4 v[10:13], v14, s[48:51], 0 offen\ns_waitcnt vmcnt(1)\nbuffer_store_dwordx4 v[20:23], v24, s[48:51], 0 offen\ns_endpgm')

def ln_prologue_loads(a, sx, sst, smod, srow0, modA, modS, XR=16, ld=''):
    a('s_lshl_b32 s5, s3, 3\ns_add_u32 s5, s5, s%d\ns_lshl_b32 s6, s5, 10\ns_lshl_b32 s7, s5, 7\nv_lshlrev_b32 v2, 4, v1' % srow0)
    a('buffer_load_dwordx4 v[8:11], v2, s[%d:%d], s7 offen%s' % (sst, sst+3, ld))
    a('s_add_u32 s7, s6, 4096')
    for i in range(8):
        a('buffer_load_dwordx4 v[%d:%d], v2, s[%d:%d], s%d offen offset:%d%s' % (XR+4*i, XR+4*i+3, sx, sx+3, 6 if i < 4 else 7, (i & 3)*1024, ld))
    a('v_lshlrev_b32 v3, 5, v1')
    for (d, off) in ((48, modA), (56, modS)):
        a('s_mov_b32 s5, %d' % off)
        for h in range(2):
            a('buffer_load_dwordx4 v[%d:%d], v3, s[%d:%d], s5 offen offset:%d%s' % (d+4*h, d+4*h+3, smod, smod+3, 16*h, ld))
def ln_prologue_compute(a, abase, nafter, XR=16):
    a('s_waitcnt vmcnt(%d)' % (12+nafter))
    a('v_add_f32 v8, v8, v10\nv_add_f32 v9, v9, v11')
    for m in (QP1, QP2, 'row_half_mirror'):
        dpp_add(a, 8, m); dpp_add(a, 9, m)
    a('v_mul_f32 v8, %s, v8\nv_mul_f32 v9, %s, v9\nv_fma_f32 v9, -v8, v8, v9\nv_max_f32 v9, 0, v9\nv_add_f32 v9, %s, v9\nv_rsq_f32 v9, v9\ns_nop 0\nv_mul_f32 v8, v8, v9\nv_sub_f32 v8, 0, v8' % (fbits(1/512), fbits(1/512), fbits(1e-5)))
    for i in range(8):
        a('v_readlane_b32 s%d, v9, %d\nv_readlane_b32 s%d, v8, %d' % (68+2*i, 8*i, 69+2*i, 8*i))
    a('v_lshrrev_b32 v4, 2, v1\nv_lshlrev_b32 v4, 10, v4\nv_and_b32 v5, 3, v1\nv_lshl_add_u32 v4, v5, 8, v4\nv_and_b32 v5, 15, v1\nv_lshl_add_u32 v4, v5, 4, v4')
    a('s_lshr_b32 s5, s3, 1\ns_lshl_b32 s5, s5, 14\ns_add_u32 s5, s5, %d\ns_and_b32 s6, s3, 1\ns_lshl_b32 s6, s6, 7\nv_xor_b32 v4, s6, v4\nv_add_u32 v4, s5, v4' % abase)
    a('s_waitcnt vmcnt(%d)' % nafter)
    for i in range(8):
        a('v_mov_b32 v5, s%d' % (69+2*i))
        for q in range(4):
            unpack(a, 6, 7, XR+4*i+q)
            a('v_fma_f32 v6, v6, s%d, v5\nv_fma_f32 v7, v7, s%d, v5' % (68+2*i, 68+2*i))
            a('v_fma_f32 v6, v6, v%d, v%d\nv_fma_f32 v7, v7, v%d, v%d' % (48+2*q, 56+2*q, 49+2*q, 57+2*q))
            a('v_cvt_pk_bf16_f32 v%d, v6, v7' % (XR+4*i+q))
        a('v_xor_b32 v12, %d, v4\nds_write_b128 v12, v[%d:%d]' % (i << 4, XR+4*i, XR+4*i+3))
def afrag_addrs(a, d, abase_sgpr):
    a('v_lshrrev_b32 v5, 4, v1\nv_and_b32 v6, 15, v1\nv_xor_b32 v6, v5, v6\nv_lshlrev_b32 v6, 4, v6\nv_lshl_add_u32 v6, v5, 8, v6')
    for s in range(4):
        a('v_xor_b32 v%d, %d, v6\nv_add_u32 v%d, s%d, v%d' % (d+s, s << 6, d+s, abase_sgpr, d+s))
def wgmap(a, d_hi, d_lo):
    a('s_and_b32 s4, s2, 1\ns_lshl_b32 s4, s4, 2\ns_bfe_u32 s5, s2, 0x20003\ns_add_u32 s%d, s4, s5' % d_lo)
    a('s_bfe_u32 s4, s2, 0x20001\ns_lshl_b32 s4, s4, 3\ns_lshr_b32 s5, s2, 5\ns_add_u32 s%d, s4, s5' % d_hi)
def dma(a, voff, srd_, soff, ldsaddr_s, ld=''):
    a('s_mov_b32 m0, %s\nbuffer_load_dwordx4 v%d, s[%d:%d], %s offen%s lds' % (ldsaddr_s, voff, srd_, srd_+3, soff, ld))

def k1(a):
    prologue(a, 256)
    wgmap(a, 8, 9)
    srd(a, 44, 'x', 0, 2*MB); srd(a, 48, 'ws', WS_ST1, 0x40000); srd(a, 52, 'ws', WS_MOD, 6*2048); srd(a, 56, 'wqkv', 0, 512*3072)
    a('s_lshl_b32 s10, s8, 6')
    ln_prologue_loads(a, 44, 48, 52, 10, 1*2048, 0)
    RING = 65536; SLOT = 24576
    a('v_lshrrev_b32 v5, 3, v1\ns_lshl_b32 s5, s3, 3\nv_add_u32 v5, s5, v5\nv_mul_u32_u24 v64, 3072, v5')
    a('v_bfe_u32 v5, v1, 4, 1\ns_and_b32 s5, s3, 1\ns_lshl_b32 s5, s5, 1\nv_or_b32 v5, s5, v5\nv_lshlrev_b32 v5, 1, v5\nv_and_b32 v6, 7, v1\nv_xor_b32 v5, v5, v6\nv_lshl_add_u32 v64, v5, 4, v64')
    a('s_lshl_b32 s5, s9, 7\nv_add_u32 v64, s5, v64\ns_lshl_b32 s11, s3, 10\ns_add_u32 s11, s11, %d' % RING)
    def issue(c):
        for p in range(3):
            a('s_mov_b32 s5, %d\ns_add_u32 s6, s11, %d' % (c*64*3072 + p*1024, (c % 4)*SLOT + p*8192))
            dma(a, 64, 56, 's5', 's6')
    for c in range(3): issue(c)
    ln_prologue_compute(a, 0, 9)
    a('s_and_b32 s5, s3, 1\ns_lshl_b32 s5, s5, 15')
    afrag_addrs(a, 65, 5)
    a('v_lshrrev_b32 v5, 4, v1\nv_bfe_u32 v6, v1, 2, 2\nv_lshl_add_u32 v7, v5, 3, v6\nv_lshlrev_b32 v7, 7, v7')
    a('v_bfe_u32 v6, v1, 3, 1\nv_and_b32 v5, 1, v5\nv_lshl_or_b32 v5, v5, 1, v6\ns_lshr_b32 s5, s3, 1\nv_xor_b32 v5, s5, v5\nv_lshl_add_u32 v7, v5, 5, v7')
    a('v_and_b32 v5, 3, v1\nv_lshl_add_u32 v7, v5, 3, v7\nv_add_u32 v69, %d, v7\nv_add_u32 v70, %d, v7' % (RING, RING+2*SLOT))
    ACC = 72
    for r in range(24): a('v_mov_b32 v%d, 0' % (ACC+r))
    AF = 96; BF = 112
    for c in range(8):
        a('s_waitcnt vmcnt(%d) lgkmcnt(0)\ns_barrier' % (6 if c < 6 else (7-c)*3))
        if c+3 < 8: issue(c+3)
        for ks in range(2):
            st = 2*c+ks
            for rt in range(2):
                a('ds_read_b128 v[%d:%d], v%d offset:%d' % (AF+ks*8+rt*4, AF+ks*8+rt*4+3, 65+(st & 3), (st >> 2)*4096+(st & 3)*1024+rt*16384))
            for p in range(3):
                for h in range(2):
                    d = BF+ks*12+p*4+2*h
                    a('ds_read_b64_tr_b16 v[%d:%d], v%d offset:%d' % (d, d+1, 69+((c % 4) >> 1), (c & 1)*SLOT+p*8192+ks*4096+h*512))
        for ks in range(2):
            a('s_waitcnt lgkmcnt(%d)' % (8 if ks == 0 else 0))
            for p in range(3):
                for rt in range(2):
                    A = vr(AF+ks*8+rt*4, 4); B = vr(BF+ks*12+p*4, 4); D = vr(ACC+p*8+rt*4, 4)
                    if p < 2: a('v_mfma_f32_16x16x32_bf16 %s, %s, %s, %s' % (D, B, A, D))
                    else: a('v_mfma_f32_16x16x32_bf16 %s, %s, %s, %s' % (D, A, B, D))
    srd(a, 60, 'ws', WS_Q, 6*MB); srd(a, 64, 'ws', WS_KMAX, 32*64*4)
    a('s_lshl_b32 s5, s9, 2\ns_lshr_b32 s6, s3, 1\ns_add_u32 s5, s5, s6\ns_lshl_b32 s5, s5, 6\ns_lshl_b32 s6, s8, 1\ns_add_u32 s5, s5, s6\ns_and_b32 s6, s3, 1\ns_add_u32 s5, s5, s6')
    a('s_lshl_b32 s6, s5, 10\ns_lshl_b32 s7, s5, 2\nv_lshlrev_b32 v2, 4, v1')
    for r in range(8): a('v_mul_f32 v%d, %s, v%d' % (ACC+r, fbits(0.25*1.4426950408889634), ACC+r))
    for rt in range(2):
        k = ACC+8+rt*4
        a('v_mul_f32 v%d, v%d, v%d' % (8+rt, k, k))
        for e in range(1, 4): a('v_fmac_f32 v%d, v%d, v%d' % (8+rt, k+e, k+e))
    for rt in range(2): red_xor16(a, 8+rt, 6)
    for rt in range(2): red_xor32(a, 8+rt, 6)
    a('v_max_f32 v8, v8, v9')
    for m in (QP1, QP2, 'row_half_mirror', 'row_mirror'): dpp_add(a, 8, m, 'v_max_f32')
    for p in range(3):
        b = ACC+p*8; d = 16+4*p
        a('v_cvt_pk_bf16_f32 v%d, v%d, v%d\nv_cvt_pk_bf16_f32 v%d, v%d, v%d\nv_cvt_pk_bf16_f32 v%d, v%d, v%d\nv_cvt_pk_bf16_f32 v%d, v%d, v%d' % (d, b, b+1, d+1, b+2, b+3, d+2, b+4, b+5, d+3, b+6, b+7))
        sw = 'v_permlane16_swap_b32' if p < 2 else 'v_permlane32_swap_b32'
        a('%s v%d, v%d\n%s v%d, v%d' % (sw, d, d+2, sw, d+1, d+3))
        a('s_add_u32 s4, s6, %d\nbuffer_store_dwordx4 v[%d:%d], v2, s[60:63], s4 offen%s' % (p*2*MB, d, d+3, SC))
    a('v_cmp_eq_u32 vcc, 0, v1\ns_and_saveexec_b64 s[12:13], vcc\nv_mov_b32 v9, 0\nbuffer_store_dword v8, v9, s[64:67], s7 offen%s\ns_endpgm' % SC)

KERNELS = []
def build(kernels, path):
    hdr = open('cdna_kernels/%s.s.ref' % NAME).read().split('\n')
    head = [l for l in hdr if l.startswith(';') and '@launch' not in l and 'Override' not in l and 'grid=ceil' not in l]
    head = head[:head.index([l for l in head if 'd_ws' in l][0])+1]
    out = list(head)
    for (lab, fn, lds, vg) in kernels:
        out.append('; @launch kernel=%s grid=(256,1,1) block=(512,1,1) lds=%d' % (lab, lds))
    out += ['.amdgcn_target "amdgcn-amd-amdhsa--gfx950"', '.text']
    tot = 0
    for (lab, fn, lds, vg) in kernels:
        a = Asm(); a.uid = 1000*len(out)
        fn(a)
        body, nn = fix_hazards(a.l); tot += nn
        out += ['.globl %s' % lab, '.p2align 8', '.type %s,@function' % lab, lab + ':'] + body
    out += ['.section .rodata,"a"']
    for (lab, fn, lds, vg) in kernels:
        out += ['.p2align 6', '.amdhsa_kernel %s' % lab, '  .amdhsa_next_free_vgpr %d' % vg, '  .amdhsa_next_free_sgpr 102',
                '  .amdhsa_accum_offset %d' % vg, '  .amdhsa_group_segment_fixed_size 0', '  .amdhsa_kernarg_size 104',
                '  .amdhsa_user_sgpr_count 2', '  .amdhsa_user_sgpr_kernarg_segment_ptr 1', '  .amdhsa_system_sgpr_workgroup_id_x 1', '.end_amdhsa_kernel']
    open(path, 'w').write('\n'.join(out) + '\n')
    print('written', path, 'lines', len(out), 'nops', tot)
```

```python
from gen import *
import gen
def red_max_wave(a, r, t):
    for m in (QP1, QP2, 'row_half_mirror', 'row_mirror'): dpp_add(a, r, m, 'v_max_f32')
    a('v_mov_b32 v%d, v%d\nv_permlane16_swap_b32 v%d, v%d\nv_max_f32 v%d, v%d, v%d' % (t, r, r, t, r, r, t))
    a('v_mov_b32 v%d, v%d\nv_permlane32_swap_b32 v%d, v%d\nv_max_f32 v%d, v%d, v%d' % (t, r, r, t, r, r, t))
def k2(a):
    prologue(a, 256)
    a('s_and_b32 s4, s2, 7\ns_lshl_b32 s4, s4, 2\ns_bfe_u32 s5, s2, 0x20003\ns_add_u32 s8, s4, s5\ns_lshr_b32 s9, s2, 5')
    srd(a, 44, 'ws', WS_Q, 6*MB); srd(a, 48, 'ws', WS_KMAX, 32*64*4); srd(a, 52, 'ws', WS_O, 2*MB)
    Q = 4; NEG = 16; S = [32, 48]; O = 64; KF = [80, 84]; VF = [[88, 92], [96, 100]]
    a('v_lshlrev_b32 v2, 4, v1\ns_lshl_b32 s10, s8, 16')
    a('s_lshl_b32 s5, s9, 3\ns_add_u32 s5, s5, s3\ns_lshl_b32 s5, s5, 10\ns_add_u32 s5, s5, s10')
    a('buffer_load_dwordx4 v[%d:%d], v2, s[44:47], s5 offen%s' % (Q, Q+3, gen.SC))
    a('v_lshlrev_b32 v3, 2, v1\ns_lshl_b32 s5, s8, 8\nbuffer_load_dword v8, v3, s[48:51], s5 offen%s' % gen.SC)
    a('s_lshl_b32 s11, s3, 10\ns_add_u32 s12, s10, s11\ns_add_u32 s12, s12, %d' % (2*MB))
    for j in range(8):
        a('s_add_u32 s5, s12, %d\ns_add_u32 s6, s11, %d' % (j*8192, j*8192)); dma(a, 2, 44, 's5', 's6', gen.SC)
        a('s_add_u32 s5, s12, %d\ns_add_u32 s6, s11, %d' % (j*8192 + 2*MB, j*8192 + 65536)); dma(a, 2, 44, 's5', 's6', gen.SC)
    for r in range(16): a('v_mov_b32 v%d, 0\nv_mov_b32 v%d, 0' % (NEG+r, O+r))
    a('v_and_b32 v9, 27, v1\nv_cmp_eq_u32 vcc, 16, v9\nv_mov_b32 v10, 0x3f803f80\nv_mov_b32 v11, 0\ns_nop 0\nv_cndmask_b32 v9, v11, v10, vcc')
    for r in range(88, 104): a('v_mov_b32 v%d, v9' % r)
    a('v_mov_b32 v12, v2\nv_and_b32 v13, 15, v1\nv_lshlrev_b32 v13, 4, v13\nv_lshrrev_b32 v14, 5, v1\nv_lshl_add_u32 v13, v14, 8, v13\nv_add_u32 v13, 0x10000, v13')
    a('s_mov_b32 s14, 0x0000ffff\ns_mov_b32 s15, 0x0000ffff')
    a('s_waitcnt vmcnt(16)')
    red_max_wave(a, 8, 14)
    a('v_mov_b32 v10, 0')
    for q in range(4):
        unpack(a, 14, 15, Q+q); a('v_fmac_f32 v10, v14, v14\nv_fmac_f32 v10, v15, v15')
    red_xor32(a, 10, 14)
    a('v_mul_f32 v10, v10, v8\nv_mul_f32 v10, %s, v10\nv_mov_b32 v11, %s\nv_cmp_gt_f32 vcc, v10, v11' % (fbits(1.05), fbits(4096.0)))
    a('s_nop 1\ns_cmp_lg_u64 vcc, 0\ns_cselect_b32 s5, 1, 0\nv_mov_b32 v10, s5\ns_lshl_b32 s6, s3, 2\ns_add_u32 s6, s6, 0x22000\nv_mov_b32 v11, s6\nds_write_b32 v11, v10')
    a('s_waitcnt vmcnt(12) lgkmcnt(0)\ns_barrier')
    a('v_and_b32 v11, 7, v1\nv_lshlrev_b32 v11, 2, v11\nv_add_u32 v11, 0x22000, v11\nds_read_b32 v10, v11\ns_waitcnt lgkmcnt(0)\nv_cmp_ne_u32 vcc, 0, v10')
    a('s_cbranch_vccz k2_fast')
    a('s_waitcnt vmcnt(0)\ns_barrier\nv_mov_b32 v8, 0xff800000\nv_mov_b32 v14, v12\ns_mov_b32 s5, 0')
    a.label('k2_slow')
    a('ds_read_b128 v[80:83], v14\ns_waitcnt lgkmcnt(0)\nv_mfma_f32_32x32x16_bf16 v[32:47], v[80:83], v[4:7], v[16:31]')
    for r in range(0, 16, 2): a('v_max3_f32 v8, v8, v%d, v%d' % (32+r, 33+r))
    a('v_add_u32 v14, 1024, v14\ns_add_u32 s5, s5, 1\ns_cmp_lt_u32 s5, 64\ns_cbranch_scc1 k2_slow')
    a('v_mov_b32 v14, v8\nv_permlane32_swap_b32 v8, v14\nv_max_f32 v8, v8, v14\nv_sub_f32 v8, 0, v8')
    for r in range(16): a('v_mov_b32 v%d, v8' % (NEG+r))
    a.label('k2_fast')
    def rdK(buf, off): a('ds_read_b128 v[%d:%d], v12 offset:%d' % (KF[buf], KF[buf]+3, off))
    def rdV(buf, off):
        a('s_mov_b64 exec, s[14:15]')
        for g in range(2): a('ds_read_b128 v[%d:%d], v13 offset:%d' % (VF[buf][g], VF[buf][g]+3, off+g*512))
        a('s_mov_b64 exec, -1')
    def mS(buf, kb): a('v_mfma_f32_32x32x16_bf16 v[%d:%d], v[%d:%d], v[%d:%d], v[%d:%d]' % (S[buf], S[buf]+15, KF[kb], KF[kb]+3, Q, Q+3, NEG, NEG+15))
    rdK(0, 0); rdK(1, 1024); rdV(0, 0)
    a('s_waitcnt lgkmcnt(0)'); mS(0, 0)
    a('s_mov_b32 s13, 0')
    a.label('k2_loop')
    a('s_cmp_eq_u32 s13, 1\ns_cbranch_scc0 k2_ns\ns_waitcnt vmcnt(0)\ns_barrier'); a.label('k2_ns')
    for t in range(8):
        b = t & 1; s = S[b]
        a('s_waitcnt lgkmcnt(0)')
        mS(1-b, 1-b)
        rdK(b, (t+2)*1024); rdV(1-b, (t+1)*1024)
        for hf in range(2):
            for r in range(8*hf, 8*hf+8): a('v_exp_f32 v%d, v%d' % (s+r, s+r))
            for r in range(4): a('v_cvt_pk_bf16_f32 v%d, v%d, v%d' % (s+8*hf+r, s+8*hf+2*r, s+8*hf+2*r+1))
            a('v_mfma_f32_32x32x16_bf16 v[%d:%d], v[%d:%d], v[%d:%d], v[%d:%d]' % (O, O+15, VF[b][hf], VF[b][hf]+3, s+8*hf, s+8*hf+3, O, O+15))
    a('v_add_u32 v12, 8192, v12\nv_add_u32 v13, 8192, v13\ns_add_u32 s13, s13, 1\ns_cmp_lt_u32 s13, 8\ns_cbranch_scc1 k2_loop')
    a('s_waitcnt lgkmcnt(0)\nv_rcp_f32 v8, v%d' % (O+8))
    for r in range(8): a('v_mul_f32 v%d, v%d, v8' % (O+r, O+r))
    for r in range(4): a('v_cvt_pk_bf16_f32 v%d, v%d, v%d' % (16+r, O+2*r, O+2*r+1))
    a('v_bfe_u32 v9, v1, 4, 1\nv_lshlrev_b32 v9, 14, v9\nv_lshrrev_b32 v10, 5, v1\nv_lshl_add_u32 v9, v10, 8, v9\nv_and_b32 v10, 15, v1\nv_lshl_add_u32 v9, v10, 4, v9')
    a('s_lshl_b32 s5, s9, 4\ns_lshl_b32 s6, s3, 1\ns_add_u32 s5, s5, s6\ns_lshl_b32 s5, s5, 14\ns_lshr_b32 s6, s8, 1\ns_lshl_b32 s6, s6, 10\ns_add_u32 s5, s5, s6\ns_and_b32 s6, s8, 1\ns_lshl_b32 s6, s6, 9\ns_add_u32 s5, s5, s6')
    a('buffer_store_dwordx4 v[16:19], v9, s[52:55], s5 offen%s\ns_endpgm' % gen.SC)

def resid_epilogue(a, ACC, sres, sout, smod, modoff, sst, do_stats):
    a('v_and_b32 v5, 15, v1\ns_and_b32 s5, s3, 3\ns_lshl_b32 s5, s5, 4\ns_lshl_b32 s6, s8, 6\ns_add_u32 s5, s5, s6\nv_add_u32 v5, s5, v5\nv_mov_b32 v11, v5')
    a('v_bfe_u32 v6, v1, 4, 1\nv_lshrrev_b32 v7, 5, v1\nv_lshlrev_b32 v6, 4, v6\nv_lshl_add_u32 v6, v7, 3, v6')
    a('s_lshr_b32 s5, s3, 2\ns_lshl_b32 s5, s5, 5\ns_lshl_b32 s6, s9, 6\ns_add_u32 s5, s5, s6\nv_add_u32 v6, s5, v6')
    a('v_lshlrev_b32 v10, 10, v5\nv_lshl_add_u32 v10, v6, 1, v10\nv_lshlrev_b32 v6, 2, v6')
    a('buffer_load_dwordx4 v[12:15], v10, s[%d:%d], 0 offen%s' % (sres, sres+3, gen.SC if sres != 44 else ''))
    a('s_mov_b32 s5, %d\nbuffer_load_dwordx4 v[16:19], v6, s[%d:%d], s5 offen%s\nbuffer_load_dwordx4 v[20:23], v6, s[%d:%d], s5 offen offset:16%s' % (modoff, smod, smod+3, gen.SC, smod, smod+3, gen.SC))
    return
def resid_finish(a, ACC, sout, sst, do_stats):
    for r in range(4): a('v_permlane16_swap_b32 v%d, v%d' % (ACC+r, ACC+4+r))
    a('s_waitcnt vmcnt(0)')
    for q in range(4):
        unpack(a, 6, 7, 12+q)
        a('v_fma_f32 v6, v%d, v%d, v6\nv_fma_f32 v7, v%d, v%d, v7\nv_cvt_pk_bf16_f32 v%d, v6, v7' % (ACC+2*q, 16+2*q, ACC+2*q+1, 17+2*q, 12+q))
    a('buffer_store_dwordx4 v[12:15], v10, s[%d:%d], 0 offen%s' % (sout, sout+3, gen.SC if do_stats else ''))
    if do_stats:
        a('v_mov_b32 v8, 0\nv_mov_b32 v9, 0')
        for q in range(4):
            unpack(a, 6, 7, 12+q)
            a('v_add_f32 v8, v8, v6\nv_fmac_f32 v9, v6, v6\nv_add_f32 v8, v8, v7\nv_fmac_f32 v9, v7, v7')
        for r in (8, 9): red_xor16(a, r, 6)
        for r in (8, 9): red_xor32(a, r, 6)
        a('s_lshr_b32 s5, s3, 2\ns_lshl_b32 s6, s9, 1\ns_add_u32 s5, s5, s6\ns_lshl_b32 s5, s5, 3\nv_lshlrev_b32 v5, 7, v11')
        a('v_cmp_gt_u32 vcc, 16, v1\ns_and_saveexec_b64 s[12:13], vcc\nbuffer_store_dwordx2 v[8:9], v5, s[%d:%d], s5 offen%s\ns_mov_b64 exec, s[12:13]' % (sst, sst+3, gen.SC))
def wpanel_dma_addr(a, d, stride, fmode):
    a('v_lshrrev_b32 v5, 3, v1\ns_lshl_b32 s5, s3, 3\nv_add_u32 v5, s5, v5\nv_mul_u32_u24 v%d, %d, v5' % (d, stride))
    if fmode == 'm1': a('v_bfe_u32 v5, v1, 4, 2')
    else: a('v_bfe_u32 v5, v1, 4, 1\ns_and_b32 s5, s3, 1\ns_lshl_b32 s5, s5, 1\nv_or_b32 v5, s5, v5')
    a('v_lshlrev_b32 v5, 1, v5\nv_and_b32 v6, 7, v1\nv_xor_b32 v5, v5, v6\nv_lshl_add_u32 v%d, v5, 4, v%d\ns_lshl_b32 s5, s9, 7\nv_add_u32 v%d, s5, v%d' % (d, d, d, d))
def wpanel_rd_addr(a, d, fmode, base):
    a('v_lshrrev_b32 v5, 4, v1\nv_bfe_u32 v6, v1, 2, 2')
    if fmode == 'm1':
        a('v_lshrrev_b32 v7, 1, v5\nv_lshlrev_b32 v7, 4, v7\nv_and_b32 v8, 1, v5\nv_lshl_add_u32 v7, v8, 2, v7\nv_add_u32 v7, v7, v6\nv_bfe_u32 v8, v7, 1, 2')
    else:
        a('v_lshl_add_u32 v7, v5, 3, v6\nv_bfe_u32 v8, v1, 3, 1\nv_and_b32 v9, 1, v5\nv_lshl_or_b32 v8, v9, 1, v8')
    a('v_lshlrev_b32 v7, 7, v7\nv_and_b32 v9, 3, v1\nv_lshl_add_u32 v7, v9, 3, v7\nv_add_u32 v7, %d, v7\ns_lshr_b32 s5, s3, 2\ns_lshl_b32 s5, s5, 1' % base)
    a('v_xor_b32 v9, s5, v8\nv_lshl_add_u32 v%d, v9, 5, v7\ns_add_u32 s5, s5, 1\nv_xor_b32 v9, s5, v8\nv_lshl_add_u32 v%d, v9, 5, v7' % (d, d+1))
def k3(a):
    prologue(a, 256)
    wgmap(a, 8, 9)
    srd(a, 44, 'x', 0, 2*MB); srd(a, 48, 'ws', WS_O, 2*MB); srd(a, 52, 'ws', WS_MOD, 6*2048); srd(a, 56, 'wo', 0, 512*1024)
    srd(a, 60, 'ws', WS_X1, 2*MB); srd(a, 64, 'ws', WS_ST2, 0x40000)
    wpanel_dma_addr(a, 24, 1024, 'm1')
    a('v_lshlrev_b32 v2, 4, v1\ns_lshl_b32 s10, s8, 16\ns_lshl_b32 s11, s3, 10')
    a('s_lshr_b32 s4, s3, 1\ns_lshl_b32 s4, s4, 14\ns_and_b32 s5, s3, 1\ns_lshl_b32 s5, s5, 11\ns_add_u32 s12, s4, s5')
    for c in range(4):
        for j in range(2):
            a('s_add_u32 s6, s12, %d\ns_add_u32 s5, s6, s10' % (c*4096+j*1024)); dma(a, 2, 48, 's5', 's6', gen.SC)
        for j in range(2):
            a('s_mov_b32 s5, %d\ns_add_u32 s6, s11, %d' % ((c*128+j*64)*1024, 65536+(c*128+j*64)*128)); dma(a, 24, 56, 's5', 's6')
    resid_epilogue(a, 32, 44, 60, 52, 2*2048, 64, True)
    wpanel_rd_addr(a, 25, 'm1', 65536)
    a('s_and_b32 s5, s3, 3\ns_lshl_b32 s5, s5, 14\nv_add_u32 v27, s5, v2')
    ACC = 32
    for r in range(8): a('v_mov_b32 v%d, 0' % (ACC+r))
    AF = 40; BF = 56
    for c in range(4):
        a('s_waitcnt vmcnt(%d)\ns_barrier' % (3+4*(3-c)))
        for ks in range(4):
            st = 4*c+ks
            a('ds_read_b128 v[%d:%d], v27 offset:%d' % (AF+4*ks, AF+4*ks+3, st*1024))
            for t in range(2):
                for h in range(2):
                    d = BF+ks*8+t*4+2*h
                    a('ds_read_b64_tr_b16 v[%d:%d], v%d offset:%d' % (d, d+1, 25+t, st*4096+h*1024))
        for ks in range(4):
            a('s_waitcnt lgkmcnt(%d)' % (5*(3-ks)))
            for t in range(2):
                a('v_mfma_f32_16x16x32_bf16 v[%d:%d], v[%d:%d], v[%d:%d], v[%d:%d]' % (ACC+4*t, ACC+4*t+3, BF+ks*8+t*4, BF+ks*8+t*4+3, AF+4*ks, AF+4*ks+3, ACC+4*t, ACC+4*t+3))
    resid_finish(a, ACC, 60, 64, True)
    a('s_endpgm')
def rowA_dma_addr(a, d, stride):
    for j in range(2):
        a('v_lshrrev_b32 v5, 4, v1\ns_lshl_b32 s5, s3, 3\ns_add_u32 s5, s5, %d\nv_add_u32 v5, s5, v5\nv_mul_u32_u24 v%d, %d, v5' % (4*j, d+j, stride))
        a('v_and_b32 v5, 15, v5\nv_and_b32 v6, 15, v1\nv_xor_b32 v5, v5, v6\nv_lshl_add_u32 v%d, v5, 4, v%d' % (d+j, d+j))
def k6(a):
    prologue(a, 256)
    wgmap(a, 8, 9)
    srd(a, 44, 'ws', WS_X1, 2*MB); srd(a, 48, 'ws', WS_U, 2048*1792); srd(a, 52, 'ws', WS_MOD, 6*2048); srd(a, 56, 'wout', 0, 896*1024)
    srd(a, 60, 'out', 0, 2*MB)
    NS = 5; SL = 32768
    wpanel_dma_addr(a, 24, 1024, 'nat')
    rowA_dma_addr(a, 28, 1792)
    a('s_mul_i32 s10, s8, %d\ns_lshl_b32 s11, s3, 10\ns_lshl_b32 s12, s3, 11' % (64*1792))
    def issue(c):
        sl = (c % NS)*SL
        for j in range(2):
            a('s_add_u32 s5, s10, %d\ns_add_u32 s6, s12, %d' % (c*256, sl+j*1024)); dma(a, 28+j, 48, 's5', 's6', gen.SC)
        for j in range(2):
            a('s_mov_b32 s5, %d\ns_add_u32 s6, s11, %d' % ((c*128+j*64)*1024, sl+16384+j*8192)); dma(a, 24, 56, 's5', 's6')
    for c in range(4): issue(c)
    wpanel_rd_addr(a, 25, 'nat', 16384)
    a('v_and_b32 v5, 15, v1\nv_lshrrev_b32 v6, 4, v1\nv_xor_b32 v6, v5, v6\nv_lshlrev_b32 v6, 4, v6\nv_lshl_add_u32 v6, v5, 8, v6\ns_and_b32 s5, s3, 3\ns_lshl_b32 s5, s5, 12\nv_add_u32 v6, s5, v6')
    for ks in range(4): a('v_xor_b32 v%d, %d, v6' % (64+ks, ks << 6))
    ACC = 32
    for r in range(8): a('v_mov_b32 v%d, 0' % (ACC+r))
    AF = 40; BF = 72
    cur = 0
    for c in range(7):
        rem = min(6, c+3) - c
        a('s_waitcnt vmcnt(%d)\ns_barrier' % (4*rem + (3 if c >= 5 else 0)))
        if c+4 < 7: issue(c+4)
        if c == 4: resid_epilogue(a, 32, 44, 60, 52, 5*2048, 64, False)
        sl = (c % NS)*SL
        if sl - cur >= 32768 or sl < cur:
            dl = sl - cur
            for r in (25, 26, 64, 65, 66, 67): a('v_add_u32 v%d, %s, v%d' % (r, hex(dl & 0xffffffff), r))
            cur = sl
        o = sl - cur
        for ks in range(4):
            a('ds_read_b128 v[%d:%d], v%d offset:%d' % (AF+4*ks, AF+4*ks+3, 64+ks, o))
            for t in range(2):
                for h in range(2):
                    d = BF+ks*8+t*4+2*h
                    a('ds_read_b64_tr_b16 v[%d:%d], v%d offset:%d' % (d, d+1, 25+t, o+ks*4096+h*512))
        for ks in range(4):
            a('s_waitcnt lgkmcnt(%d)' % (5*(3-ks)))
            for t in range(2):
                a('v_mfma_f32_16x16x32_bf16 v[%d:%d], v[%d:%d], v[%d:%d], v[%d:%d]' % (ACC+4*t, ACC+4*t+3, BF+ks*8+t*4, BF+ks*8+t*4+3, AF+4*ks, AF+4*ks+3, ACC+4*t, ACC+4*t+3))
    resid_finish(a, ACC, 60, 64, False)
    a('s_endpgm')
def extra_kernels():
    ks = [('k2_kernel', k2, 0x22100, 128), ('k3_kernel', k3, 131072, 128)]
    try:
        from gen3 import k4, k5
        ks += [('k4_kernel', k4, 163840, 256), ('k5_kernel', k5, 163840, 256), ('k6_kernel', k6, 163840, 128)]
    except ImportError as e: print(e)
    return ks
```

```python
from gen import *
from gen2 import rowA_dma_addr
import gen
class VM:
    def __init__(s): s.q = []
    def issue(s, tag): s.q.append(tag)
    def wait(s, done):
        last = -1
        for i, t in enumerate(s.q):
            if done(t): last = i
        n = len(s.q) - 1 - last
        return min(n, 63)
def gelu(a, r, t0, t1):
    c1 = -2*1.4426950408889634*0.7978845608028654; c2 = c1*0.044715
    a('v_mul_f32 v%d, v%d, v%d\nv_fma_f32 v%d, v%d, s%d, v%d' % (t0, r, r, t0, t0, 90, t1))
    a('v_mul_f32 v%d, v%d, v%d\nv_exp_f32 v%d, v%d\nv_add_f32 v%d, 1.0, v%d\nv_rcp_f32 v%d, v%d\nv_mul_f32 v%d, v%d, v%d' % (t0, t0, r, t0, t0, t0, t0, t0, t0, r, r, t0))
def gelu_consts(a, t1):
    c1 = -2*1.4426950408889634*0.7978845608028654; c2 = c1*0.044715
    a('s_mov_b32 s90, %s\nv_mov_b32 v%d, %s' % (fbits(c2), t1, fbits(c1)))
def pair_col_addr(a, d):
    a('v_bfe_u32 v5, v1, 4, 1\nv_lshlrev_b32 v5, 5, v5\nv_lshrrev_b32 v6, 5, v1\nv_lshl_add_u32 v5, v6, 4, v5\ns_lshr_b32 s5, s3, 2\ns_lshl_b32 s5, s5, 7\nv_add_u32 v%d, s5, v5' % d)
def store_pairs(a, src, vaddr, srd_, soff, sc):
    for p in range(2):
        b = src+4*p
        a('v_permlane16_swap_b32 v%d, v%d\nv_permlane16_swap_b32 v%d, v%d' % (b, b+2, b+1, b+3))
    a('buffer_store_dwordx4 v[%d:%d], v%d, s[%d:%d], %s offen%s' % (src, src+3, vaddr, srd_, srd_+3, soff, sc))
    a('s_lshr_b32 s5, s3, 2\nv_bfe_u32 v5, v1, 4, 1\nv_and_b32 v5, s5, v5\nv_cmp_eq_u32 vcc, 0, v5\ns_and_saveexec_b64 s[12:13], vcc')
    a('buffer_store_dwordx4 v[%d:%d], v%d, s[%d:%d], %s offen offset:64%s\ns_mov_b64 exec, s[12:13]' % (src+4, src+7, vaddr, srd_, srd_+3, soff, sc))
def k4(a):
    prologue(a, 256)
    wgmap(a, 8, 9)
    srd(a, 44, 'ws', WS_X1, 2*MB); srd(a, 48, 'ws', WS_ST2, 0x40000); srd(a, 52, 'ws', WS_MOD, 6*2048); srd(a, 56, 'ws', WS_WIN, 512*3584)
    srd(a, 60, 'ws', WS_ST3, 0x40000); srd(a, 64, 'ws', WS_FLAG, 0x8000)
    a('s_lshl_b32 s10, s8, 6')
    ln_prologue_loads(a, 44, 48, 52, 10, 4*2048, 3*2048, ld=gen.SC)
    RING = 65536; NP = 84
    vm = VM()
    a('v_lshlrev_b32 v2, 4, v1\ns_lshl_b32 s14, s3, 10\ns_mul_i32 s15, s9, %d\ns_add_u32 s15, s15, s14\ns_add_u32 s14, s14, %d' % (2*512*224, RING))
    st = {'i': 0}
    def issue_to(ilim):
        while st['i'] <= min(27, ilim):
            dma(a, 2, 56, 's15', 's14', gen.SC)
            a('s_add_u32 s15, s15, 8192\ns_add_u32 s14, s14, 8192\ns_cmp_ge_u32 s14, %d\ns_cselect_b32 s5, %d, 0\ns_sub_u32 s14, s14, s5' % (RING+NP*1024, NP*1024))
            vm.issue(st['i']); st['i'] += 1
    issue_to(76//8)
    ln_prologue_compute(a, 0, st['i'])
    a('s_waitcnt lgkmcnt(0)\ns_barrier')
    a('s_and_b32 s5, s3, 3\ns_lshl_b32 s5, s5, 14')
    afrag_addrs(a, 65, 5)
    for stp in range(16):
        a('ds_read_b128 v[%d:%d], v%d offset:%d' % (128+4*stp, 131+4*stp, 65+(stp & 3), (stp >> 2)*4096+(stp & 3)*1024))
    a('v_lshrrev_b32 v5, 5, v1\nv_lshlrev_b32 v5, 4, v5\nv_bfe_u32 v6, v1, 4, 1\nv_lshl_add_u32 v5, v6, 2, v5\nv_bfe_u32 v6, v1, 2, 2\nv_add_u32 v5, v5, v6\nv_mul_u32_u24 v5, 224, v5')
    a('v_and_b32 v6, 3, v1\nv_lshl_add_u32 v5, v6, 3, v5\ns_lshr_b32 s5, s3, 2\ns_lshl_b32 s5, s5, 7\ns_add_u32 s5, s5, %d\nv_add_u32 v69, s5, v5\nv_add_u32 v70, %d, v69' % (RING, 3*14336))
    Z = [72, 88]
    for r in range(32): a('v_mov_b32 v%d, 0' % (72+r))
    BF = 192
    gelu_consts(a, 104)
    for c in range(16):
        need = (14*c+13)//8
        a('s_waitcnt vmcnt(%d) lgkmcnt(0)\ns_barrier' % vm.wait(lambda t: t <= need))
        issue_to((14*c+76)//8)
        sl = c % 6
        for ks in range(2):
            for t in range(4):
                for h in range(2):
                    d = BF+ks*16+t*4+2*h
                    a('ds_read_b64_tr_b16 v[%d:%d], v%d offset:%d' % (d, d+1, 69+sl//3, (sl % 3)*14336+ks*7168+h*1792+t*32))
        for ks in range(2):
            a('s_waitcnt lgkmcnt(%d)' % (8 if ks == 0 else 0))
            stp = (2*c+ks) % 16
            for t in range(4):
                D = vr(Z[c//8]+4*t, 4)
                a('v_mfma_f32_16x16x32_bf16 %s, %s, %s, %s' % (D, vr(BF+ks*16+t*4, 4), vr(128+4*stp, 4), D))
        if c == 7:
            for r in range(16): gelu(a, 72+r, 106+(r & 1), 104)
            a('v_mov_b32 v8, 0\nv_mov_b32 v9, 0')
            for r in range(12): a('v_add_f32 v8, v8, v%d\nv_fmac_f32 v9, v%d, v%d' % (72+r, 72+r, 72+r))
            a('s_cmp_ge_u32 s3, 4\ns_cbranch_scc1 k4_s3')
            for r in range(12, 16): a('v_add_f32 v8, v8, v%d\nv_fmac_f32 v9, v%d, v%d' % (72+r, 72+r, 72+r))
            a.label('k4_s3')
            for r in (8, 9): red_xor16(a, r, 6)
            for r in (8, 9): red_xor32(a, r, 6)
            a('v_and_b32 v105, 15, v1\ns_and_b32 s5, s3, 3\ns_lshl_b32 s5, s5, 4\ns_add_u32 s5, s5, s10\nv_add_u32 v105, s5, v105')
            a('s_lshr_b32 s5, s3, 2\ns_lshl_b32 s6, s9, 1\ns_add_u32 s5, s5, s6\ns_lshl_b32 s5, s5, 3\nv_lshlrev_b32 v5, 7, v105')
            a('v_cmp_gt_u32 vcc, 16, v1\ns_and_saveexec_b64 s[12:13], vcc\nbuffer_store_dwordx2 v[8:9], v5, s[60:63], s5 offen sc0 sc1\ns_mov_b64 exec, s[12:13]')
            a('s_waitcnt vmcnt(0)')
            vm.q = []
            a('v_mov_b32 v5, 1\ns_lshl_b32 s5, s8, 8\nv_mov_b32 v6, s5\nv_cmp_eq_u32 vcc, 0, v1\ns_and_saveexec_b64 s[12:13], vcc\nbuffer_atomic_add v5, v6, s[64:67], 0 offen sc1\ns_mov_b64 exec, s[12:13]')
    srd(a, 44, 'ws', WS_Z1, 4*MB); srd(a, 48, 'ws', WS_Z2N, 2048*1792)
    for r in range(16): gelu(a, 88+r, 106+(r & 1), 104)
    for r in range(8): a('v_cvt_pk_bf16_f32 v%d, v%d, v%d' % (112+r, 88+2*r, 89+2*r))
    a('s_lshl_b32 s5, s8, 3\ns_add_u32 s5, s5, s9\ns_lshl_b32 s5, s5, 3\ns_add_u32 s5, s5, s3\ns_lshl_b32 s5, s5, 11')
    a('buffer_store_dwordx4 v[112:115], v2, s[44:47], s5 offen%s\nbuffer_store_dwordx4 v[116:119], v2, s[44:47], s5 offen offset:1024%s' % (gen.SC, gen.SC))
    a('s_lshl_b32 s5, s8, 8\nv_mov_b32 v6, s5\ns_mov_b32 s6, 0')
    a.label('k4_poll')
    a('buffer_load_dword v5, v6, s[64:67], 0 offen sc0 sc1\ns_waitcnt vmcnt(0)\nv_readfirstlane_b32 s7, v5\ns_add_u32 s6, s6, 1\ns_cmp_gt_u32 s6, 0x40000\ns_cbranch_scc1 k4_pd\ns_cmp_lt_u32 s7, 64\ns_cbranch_scc1 k4_poll')
    a.label('k4_pd')
    a('v_lshrrev_b32 v5, 4, v1\nv_lshlrev_b32 v5, 5, v5\nv_lshl_add_u32 v5, v105, 7, v5')
    a('buffer_load_dwordx4 v[8:11], v5, s[60:63], 0 offen sc0 sc1\nbuffer_load_dwordx4 v[12:15], v5, s[60:63], 0 offen offset:16 sc0 sc1')
    pair_col_addr(a, 16)
    a('v_lshrrev_b32 v5, 1, v105\nv_and_b32 v5, 4, v5\nv_lshlrev_b32 v6, 1, v105\nv_and_b32 v6, 8, v6\nv_and_b32 v7, 0xfffffff3, v105\nv_or3_b32 v5, v5, v6, v7\nv_mul_u32_u24 v5, 224, v5\nv_add_u32 v16, v16, v5\ns_mul_i32 s14, s9, %d' % (2048*224))
    a('s_waitcnt vmcnt(0)\nv_add_f32 v8, v8, v10\nv_add_f32 v9, v9, v11\nv_add_f32 v12, v12, v14\nv_add_f32 v13, v13, v15\nv_add_f32 v8, v8, v12\nv_add_f32 v9, v9, v13')
    for r in (8, 9): red_xor16(a, r, 6)
    for r in (8, 9): red_xor32(a, r, 6)
    a('v_mul_f32 v8, %s, v8\nv_mul_f32 v9, %s, v9\nv_fma_f32 v9, -v8, v8, v9\nv_max_f32 v9, 0, v9\nv_add_f32 v9, %s, v9\nv_rsq_f32 v9, v9\ns_nop 0\nv_mul_f32 v8, v8, v9\nv_sub_f32 v8, 0, v8' % (fbits(1/896), fbits(1/896), fbits(1e-5)))
    for r in range(16): a('v_fma_f32 v%d, v%d, v9, v8' % (72+r, 72+r))
    for r in range(8): a('v_cvt_pk_bf16_f32 v%d, v%d, v%d' % (112+r, 72+2*r, 73+2*r))
    store_pairs(a, 112, 16, 48, 's14', gen.SC)
    a('s_endpgm')
def k5(a):
    prologue(a, 256)
    wgmap(a, 8, 9)
    srd(a, 44, 'wsp', 0, 2048*4096); srd(a, 48, 'ws', WS_Z2N, 2048*1792); srd(a, 52, 'ws', WS_Z1, 4*MB); srd(a, 56, 'bsp', 0, 4096); srd(a, 60, 'ws', WS_U, 2048*1792)
    vm = VM()
    BR = 65536; NP = 84
    rowA_dma_addr(a, 28, 4096)
    a('s_lshl_b32 s10, s8, 18\ns_lshl_b32 s12, s3, 11')
    a('v_lshlrev_b32 v2, 4, v1\ns_lshl_b32 s14, s3, 10\ns_mul_i32 s15, s9, %d\ns_add_u32 s15, s15, s14\ns_add_u32 s14, s14, %d' % (2048*224, BR))
    st = {'i': 0, 'a': 0}
    def issueB(ilim):
        while st['i'] <= min(55, ilim):
            dma(a, 2, 48, 's15', 's14', gen.SC)
            a('s_add_u32 s15, s15, 8192\ns_add_u32 s14, s14, 8192\ns_cmp_ge_u32 s14, %d\ns_cselect_b32 s5, %d, 0\ns_sub_u32 s14, s14, s5' % (BR+NP*1024, NP*1024))
            vm.issue(('B', st['i'])); st['i'] += 1
    def issueA(c):
        if c > 15: return
        for j in range(2):
            a('s_add_u32 s5, s10, %d\ns_add_u32 s6, s12, %d' % (c*256, (c % 4)*16384+j*1024)); dma(a, 28+j, 44, 's5', 's6')
            vm.issue(('A', c))
    for c in range(3):
        issueA(c); issueB(min((28*c+27)//8, 76//8))
    a('s_lshl_b32 s5, s8, 3\ns_add_u32 s5, s5, s9\ns_lshl_b32 s5, s5, 3\ns_add_u32 s5, s5, s3\ns_lshl_b32 s5, s5, 11')
    a('buffer_load_dwordx4 v[112:115], v2, s[52:55], s5 offen%s\nbuffer_load_dwordx4 v[116:119], v2, s[52:55], s5 offen offset:1024%s' % (gen.SC, gen.SC)); vm.issue('z'); vm.issue('z')
    a('v_and_b32 v105, 15, v1\ns_and_b32 s5, s3, 3\ns_lshl_b32 s5, s5, 4\ns_lshl_b32 s6, s8, 6\ns_add_u32 s5, s5, s6\nv_add_u32 v105, s5, v105\nv_lshlrev_b32 v5, 1, v105\nbuffer_load_ushort v104, v5, s[56:59], 0 offen'); vm.issue('z')
    a('v_and_b32 v5, 15, v1\nv_lshrrev_b32 v6, 4, v1\ns_lshr_b32 s5, s3, 1\ns_lshl_b32 s5, s5, 2\nv_add_u32 v6, s5, v6\nv_xor_b32 v6, v5, v6\nv_lshlrev_b32 v6, 4, v6\nv_lshl_add_u32 v6, v5, 8, v6\ns_and_b32 s5, s3, 1\ns_lshl_b32 s5, s5, 13\nv_add_u32 v64, s5, v6')
    a('v_lshrrev_b32 v5, 5, v1\nv_lshlrev_b32 v5, 4, v5\nv_bfe_u32 v6, v1, 4, 1\nv_lshl_add_u32 v5, v6, 2, v5\nv_bfe_u32 v6, v1, 2, 2\nv_add_u32 v5, v5, v6\ns_lshr_b32 s5, s3, 1\ns_lshl_b32 s5, s5, 5\nv_add_u32 v5, s5, v5\nv_mul_u32_u24 v5, 224, v5')
    a('v_and_b32 v6, 3, v1\nv_lshl_add_u32 v5, v6, 3, v5')
    for s in range(3): a('v_add_u32 v%d, %d, v5' % (65+s, BR+s*28672))
    ACC = 128
    for r in range(56): a('v_mov_b32 v%d, 0' % (ACC+r))
    AF = 68; BF = 76
    for c in range(16):
        needB = (28*c+27)//8
        a('s_waitcnt vmcnt(%d) lgkmcnt(0)\ns_barrier' % vm.wait(lambda t: (t[0] == 'A' and t[1] <= c) or (t[0] == 'B' and t[1] <= needB)))
        issueA(c+3); issueB((28*c+76)//8)
        for rt in range(2): a('ds_read_b128 v[%d:%d], v64 offset:%d' % (AF+4*rt, AF+4*rt+3, (c % 4)*16384+rt*4096))
        for t in range(7):
            for h in range(2):
                a('ds_read_b64_tr_b16 v[%d:%d], v%d offset:%d' % (BF+4*t+2*h, BF+4*t+2*h+1, 65+c % 3, h*1792+t*32))
        for t in range(7):
            if t in (0, 2, 4): a('s_waitcnt lgkmcnt(%d)' % ({0: 10, 2: 6, 4: 0}[t]))
            for rt in range(2):
                D = vr(ACC+(rt*7+t)*4, 4)
                a('v_mfma_f32_16x16x32_bf16 %s, %s, %s, %s' % (D, vr(BF+4*t, 4), vr(AF+4*rt, 4), D))
    a('s_barrier\ns_lshr_b32 s5, s3, 1\ns_mul_i32 s5, s5, %d\ns_and_b32 s6, s3, 1\ns_mul_i32 s6, s6, %d\ns_add_u32 s5, s5, s6\nv_add_u32 v5, s5, v2' % (28*1024, 14*1024))
    for j in range(14): a('ds_write_b128 v5, v[%d:%d] offset:%d' % (ACC+4*j, ACC+4*j+3, j*1024))
    a('s_waitcnt lgkmcnt(0)\ns_barrier')
    a('s_and_b32 s5, s3, 3\ns_mul_i32 s5, s5, %d\ns_lshr_b32 s6, s3, 2\ns_lshl_b32 s6, s6, 12\ns_add_u32 s5, s5, s6\nv_add_u32 v5, s5, v2\nv_add_u32 v6, %d, v5' % (7*1024, 2*28*1024))
    for kq in range(4):
        for j in range(4):
            d = 128+(kq*4+j)*4
            a('ds_read_b128 v[%d:%d], v%d offset:%d' % (d, d+3, 5+(kq >> 1), (kq & 1)*28*1024+j*1024))
    pair_col_addr(a, 16)
    a('v_mul_u32_u24 v5, 1792, v105\nv_add_u32 v16, v16, v5\ns_mul_i32 s14, s9, 224\ns_waitcnt vmcnt(0) lgkmcnt(0)\nv_lshlrev_b32 v104, 16, v104')
    for r in range(16):
        a('v_add_f32 v%d, v%d, v%d\nv_add_f32 v%d, v%d, v%d\nv_add_f32 v%d, v%d, v%d' % (128+r, 128+r, 144+r, 160+r, 160+r, 176+r, 128+r, 128+r, 160+r))
    for r in range(16):
        rnd_bf16(a, 128+r); a('v_add_f32 v%d, v%d, v104' % (128+r, 128+r)); rnd_bf16(a, 128+r)
    for q in range(8):
        unpack(a, 6, 7, 112+q)
        a('v_mul_f32 v6, v6, v%d\nv_mul_f32 v7, v7, v%d\nv_cvt_pk_bf16_f32 v%d, v6, v7' % (128+2*q, 129+2*q, 112+q))
    store_pairs(a, 112, 16, 60, 's14', gen.SC)
    a('s_endpgm')
```

```python
import sys
sys.path.insert(0, 'gen')
from gen import *
import gen
ks = [('k0_kernel', k0, 4096, 64), ('k1_kernel', k1, 163840, 256)]
try:
    from gen2 import *
    ks += extra_kernels()
except ImportError as e:
    print(e)
build(ks, sys.argv[1] if len(sys.argv) > 1 else 'cdna_kernels/%s.s' % NAME)
```

```python
import sys
sys.path.insert(0, 'gen')
from gen import *
from gen2 import *
def ke(a): a('s_endpgm')
ks = [('k0_kernel', k0, 4096, 64), ('k1_kernel', k1, 163840, 256)] + extra_kernels()
ks2 = ks + [('e%d_kernel' % i, ke, 0, 32) for i in range(4)]
build(ks2, 'v_empty.s')
```

```python
import sys, struct
sys.path.insert(0, 'gen')
from asmlib import *
NAME = 'adaLN_cond__mha_block__mixer_gmlp__prompt'
MB = 1 << 20
WS_MOD = 0; WS_KMAX = 0x4000; WS_FLAG = 0x10000
WS_ST1 = 1*MB; WS_ST2 = WS_ST1 + 0x40000; WS_ST3 = WS_ST2 + 0x40000
WS_WIN = 2*MB; WS_Q = 4*MB; WS_K = 6*MB; WS_V = 8*MB; WS_O = 10*MB; WS_X1 = 12*MB
WS_Z2N = 14*MB; WS_Z1 = 18*MB; WS_U = 22*MB
P = dict(x=16, wqkv=18, wo=20, win=24, wsp=26, bsp=28, wout=30, c=32, wmod=34, out=36, dbg=38, ws=40)
SC = ''
def fbits(x): return '0x%08x' % struct.unpack('<I', struct.pack('<f', x))[0]
def prologue(a, nwg):
    a('s_load_dwordx16 s[16:31], s[0:1], 0\ns_load_dwordx8 s[32:39], s[0:1], 64\ns_load_dwordx2 s[40:41], s[0:1], 96')
    a('s_cmp_ge_u32 s2, %d' % nwg)
    e = a.uniq('go'); a('s_cbranch_scc0 %s\ns_endpgm' % e); a.label(e)
    a('v_and_b32 v1, 63, v0\nv_lshrrev_b32 v2, 6, v0\ns_nop 0\nv_readfirstlane_b32 s3, v2')
    a('s_waitcnt lgkmcnt(0)')
    stamp_init(a); stamp_rt(a, 0); stamp(a, 1)
INSTR = False
WS_TS = 28*MB
KID = [0]
def stamp_init(a):
    if not INSTR: return
    a('s_lshl_b32 s92, s2, 8\ns_add_u32 s92, s92, 0x%x\ns_add_u32 s96, s40, s92\ns_addc_u32 s97, s41, 0\ns_mov_b32 s98, 256\ns_mov_b32 s99, 0x00020000\ns_lshl_b32 s94, s3, 2' % (WS_TS + KID[0]*256*256))
def _st(a, i, ins):
    if not INSTR: return
    l = a.uniq('st')
    a('s_cmp_eq_u32 s3, 0\ns_cbranch_scc0 %s\n%s s[92:93]\ns_waitcnt lgkmcnt(0)\nv_mov_b32 v3, s92\nbuffer_store_dword v3, off, s[96:99], 0 offset:%d' % (l, ins, 4*i))
    a.label(l)
def stamp(a, i): _st(a, i, 's_memrealtime')
def stamp_rt(a, i): _st(a, i, 's_memrealtime')
def stampw(a, i):
    if not INSTR: return
    a('s_memrealtime s[92:93]\ns_waitcnt lgkmcnt(0)\nv_mov_b32 v3, s92\nbuffer_store_dword v3, off, s[96:99], s94 offset:%d' % (4*i))
def stampc(a, i):
    if not INSTR: return
    a('s_memtime s[92:93]\ns_waitcnt lgkmcnt(0)\nv_mov_b32 v3, s92\nbuffer_store_dword v3, off, s[96:99], s94 offset:%d' % (4*i))
def stamp_out(a, kid, n=8): pass
def srd(a, d, ptr, off, size):
    if off: a('s_add_u32 s%d, s%d, 0x%x\ns_addc_u32 s%d, s%d, 0' % (d, P[ptr], off, d+1, P[ptr]+1))
    else: a('s_mov_b32 s%d, s%d\ns_mov_b32 s%d, s%d' % (d, P[ptr], d+1, P[ptr]+1))
    a('s_mov_b32 s%d, 0x%x\ns_mov_b32 s%d, 0x00020000' % (d+2, size, d+3))
def unpack(a, dlo, dhi, src):
    a('v_lshlrev_b32 v%d, 16, v%d\nv_and_b32 v%d, 0xffff0000, v%d' % (dlo, src, dhi, src))
def red_xor16(a, r, t):
    a('v_mov_b32 v%d, v%d\nv_permlane16_swap_b32 v%d, v%d\nv_add_f32 v%d, v%d, v%d' % (t, r, r, t, r, r, t))
def red_xor32(a, r, t):
    a('v_mov_b32 v%d, v%d\nv_permlane32_swap_b32 v%d, v%d\nv_add_f32 v%d, v%d, v%d' % (t, r, r, t, r, r, t))
def dpp_add(a, r, mode, op='v_add_f32'):
    a('%s_dpp v%d, v%d, v%d %s row_mask:0xf bank_mask:0xf' % (op, r, r, r, mode))
QP1 = 'quad_perm:[1,0,3,2]'; QP2 = 'quad_perm:[2,3,0,1]'
def rnd_bf16(a, r, t=None):
    a('v_cvt_pk_bf16_f32 v%d, v%d, v%d\nv_lshlrev_b32 v%d, 16, v%d' % (r, r, r, r, r))

def k0(a):
    prologue(a, 256)
    a('s_cmp_lt_u32 s2, 64\ns_cbranch_scc0 k0_b')
    a('s_cmp_lt_u32 s2, 48\ns_cbranch_scc1 k0_mod')
    srd(a, 44, 'ws', WS_FLAG, 0x8000)
    a('s_sub_u32 s4, s2, 48\ns_lshl_b32 s4, s4, 11\nv_lshlrev_b32 v2, 2, v0\nv_mov_b32 v3, 0\nbuffer_store_dword v3, v2, s[44:47], s4 offen\ns_endpgm')
    a.label('k0_mod')
    srd(a, 44, 'wmod', 0, 512*6144); srd(a, 48, 'c', 0, 1024); srd(a, 52, 'ws', WS_MOD, 6*2048)
    a('v_lshrrev_b32 v2, 3, v0\nv_and_b32 v3, 7, v0\nv_mul_u32_u24 v4, 6144, v2\nv_lshl_add_u32 v4, v3, 4, v4\nv_lshlrev_b32 v5, 1, v2\ns_lshl_b32 s4, s2, 7')
    for i in range(8):
        a('s_add_u32 s5, s4, %d\nbuffer_load_dwordx4 v[%d:%d], v4, s[44:47], s5 offen' % (i*64*6144, 16+4*i, 19+4*i))
    for i in range(8):
        a('buffer_load_ushort v%d, v5, s[48:51], 0 offen offset:%d' % (8+i, i*128))
    a('s_waitcnt vmcnt(0)')
    for i in range(8):
        r = 8+i
        a('v_lshlrev_b32 v%d, 16, v%d\nv_mul_f32 v6, %s, v%d\nv_exp_f32 v6, v6\nv_add_f32 v6, 1.0, v6\nv_rcp_f32 v6, v6\nv_mul_f32 v%d, v%d, v6' % (r, r, fbits(-1.4426950408889634), r, r, r))
        rnd_bf16(a, r)
    for e in range(8): a('v_mov_b32 v%d, 0' % (48+e))
    for i in range(8):
        for q in range(4):
            unpack(a, 6, 7, 16+4*i+q)
            a('v_fmac_f32 v%d, v6, v%d\nv_fmac_f32 v%d, v7, v%d' % (48+2*q, 8+i, 49+2*q, 8+i))
    for e in range(8):
        dpp_add(a, 48+e, 'row_ror:8')
    for e in range(8): red_xor16(a, 48+e, 6)
    for e in range(8): red_xor32(a, 48+e, 6)
    a('v_lshlrev_b32 v6, 5, v3\ns_lshl_b32 s5, s3, 8\nv_add_u32 v6, s5, v6\nv_cmp_gt_u32 vcc, 8, v1\ns_and_saveexec_b64 s[6:7], vcc')
    a('ds_write_b128 v6, v[48:51]\nds_write_b128 v6, v[52:55] offset:16\ns_mov_b64 exec, s[6:7]\ns_waitcnt lgkmcnt(0)\ns_barrier')
    a('s_cmp_eq_u32 s3, 0\ns_cbranch_scc1 k0_mod2\ns_endpgm')
    a.label('k0_mod2')
    a('v_lshlrev_b32 v6, 2, v1')
    for i in range(8): a('ds_read_b32 v%d, v6 offset:%d' % (8+i, i*256))
    a('s_waitcnt lgkmcnt(0)')
    for i in range(1, 8): a('v_add_f32 v8, v8, v%d' % (8+i))
    rnd_bf16(a, 8)
    a('s_lshr_b32 s5, s2, 3\ns_cmp_eq_u32 s5, 1\ns_cbranch_scc1 k0_p1\ns_cmp_eq_u32 s5, 4\ns_cbranch_scc0 k0_st')
    a.label('k0_p1'); a('v_add_f32 v8, 1.0, v8'); rnd_bf16(a, 8)
    a.label('k0_st')
    a('s_lshl_b32 s5, s2, 8\nbuffer_store_dword v8, v6, s[52:55], s5 offen\ns_endpgm')
    a.label('k0_b')
    a('s_cmp_lt_u32 s2, 128\ns_cbranch_scc0 k0_c')
    srd(a, 44, 'x', 0, 2*MB); srd(a, 48, 'ws', WS_ST1, 0x40000)
    a('s_sub_u32 s4, s2, 64\ns_lshl_b32 s4, s4, 5\ns_lshl_b32 s5, s3, 2\ns_add_u32 s4, s4, s5\ns_lshl_b32 s5, s4, 10\nv_lshlrev_b32 v2, 4, v1')
    for i in range(4): a('buffer_load_dwordx4 v[%d:%d], v2, s[44:47], s5 offen offset:%d' % (8+4*i, 11+4*i, i*1024))
    a('v_lshrrev_b32 v3, 2, v1\nv_lshlrev_b32 v3, 3, v3\nv_and_b32 v4, 3, v1\ns_lshl_b32 s4, s4, 7')
    for i in range(4):
        a('s_waitcnt vmcnt(%d)' % (3-i))
        S, Q = 32+2*i, 33+2*i
        a('v_mov_b32 v%d, 0\nv_mov_b32 v%d, 0' % (S, Q))
        for q in range(4):
            unpack(a, 6, 7, 8+4*i+q)
            a('v_add_f32 v%d, v%d, v6\nv_fmac_f32 v%d, v6, v6\nv_add_f32 v%d, v%d, v7\nv_fmac_f32 v%d, v7, v7' % (S, S, Q, S, S, Q))
    for m in (QP1, QP2):
        for r in range(32, 40): dpp_add(a, r, m)
    a('v_cmp_eq_u32 vcc, 0, v4\ns_and_saveexec_b64 s[6:7], vcc')
    for i in range(4): a('buffer_store_dwordx2 v[%d:%d], v3, s[48:51], s4 offen offset:%d' % (32+2*i, 33+2*i, i*128))
    a('s_endpgm')
    a.label('k0_c')
    srd(a, 44, 'win', 0, 512*3584); srd(a, 48, 'ws', WS_WIN, 512*3584)
    a('s_sub_u32 s4, s2, 128\ns_lshl_b32 s4, s4, 9\nv_add_u32 v2, s4, v0\ns_mov_b32 s5, 0x24924925')
    for ps in range(2):
        n = 2
        if ps: a('v_add_u32 v2, 0x10000, v2')
        b = 10+10*ps
        a('v_lshrrev_b32 v3, 1, v%d\nv_mul_hi_u32 v3, v3, s5' % n)
        a('v_mul_u32_u24 v4, 14, v3\nv_sub_u32 v4, v%d, v4' % n)
        a('v_and_b32 v5, 511, v3')
        a('v_lshrrev_b32 v6, 1, v5\nv_and_b32 v6, 4, v6\nv_lshlrev_b32 v7, 1, v5\nv_and_b32 v7, 8, v7\nv_and_b32 v5, 0x1f3, v5\nv_or3_b32 v5, v5, v6, v7')
        a('v_bfe_u32 v6, v3, 9, 1\nv_xor_b32 v6, 1, v6\nv_mul_u32_u24 v6, 1792, v6')
        a('v_lshrrev_b32 v7, 10, v3\nv_mul_u32_u24 v7, 224, v7')
        a('v_mul_u32_u24 v5, 3584, v5\nv_add3_u32 v5, v5, v6, v7\nv_lshl_add_u32 v5, v4, 4, v5')
        a('v_cmp_gt_u32 vcc, 114688, v%d\nv_mov_b32 v6, 0x7fffffff\ns_nop 0\nv_cndmask_b32 v5, v6, v5, vcc' % n)
        a('buffer_load_dwordx4 v[%d:%d], v5, s[44:47], 0 offen\nv_lshlrev_b32 v%d, 4, v%d' % (b, b+3, b+4, n))
    a('s_waitcnt vmcnt(1)\nbuffer_store_dwordx4 v[10:13], v14, s[48:51], 0 offen\ns_waitcnt vmcnt(1)\nbuffer_store_dwordx4 v[20:23], v24, s[48:51], 0 offen\ns_endpgm')

def ln_prologue_loads(a, sx, sst, smod, srow0, modA, modS, XR=16, ld=''):
    a('s_lshl_b32 s5, s3, 3\ns_add_u32 s5, s5, s%d\ns_lshl_b32 s6, s5, 10\ns_lshl_b32 s7, s5, 7\nv_lshlrev_b32 v2, 4, v1' % srow0)
    a('buffer_load_dwordx4 v[8:11], v2, s[%d:%d], s7 offen%s' % (sst, sst+3, ld))
    a('s_add_u32 s7, s6, 4096')
    for i in range(8):
        a('buffer_load_dwordx4 v[%d:%d], v2, s[%d:%d], s%d offen offset:%d%s' % (XR+4*i, XR+4*i+3, sx, sx+3, 6 if i < 4 else 7, (i & 3)*1024, ld))
    a('v_lshlrev_b32 v3, 5, v1')
    for (d, off) in ((48, modA), (56, modS)):
        a('s_mov_b32 s5, %d' % off)
        for h in range(2):
            a('buffer_load_dwordx4 v[%d:%d], v3, s[%d:%d], s5 offen offset:%d%s' % (d+4*h, d+4*h+3, smod, smod+3, 16*h, ld))
def ln_prologue_compute(a, abase, nafter, XR=16):
    a('s_waitcnt vmcnt(%d)' % (12+nafter))
    a('v_add_f32 v8, v8, v10\nv_add_f32 v9, v9, v11')
    for m in (QP1, QP2, 'row_half_mirror'):
        dpp_add(a, 8, m); dpp_add(a, 9, m)
    a('v_mul_f32 v8, %s, v8\nv_mul_f32 v9, %s, v9\nv_fma_f32 v9, -v8, v8, v9\nv_max_f32 v9, 0, v9\nv_add_f32 v9, %s, v9\nv_rsq_f32 v9, v9\ns_nop 0\nv_mul_f32 v8, v8, v9\nv_sub_f32 v8, 0, v8' % (fbits(1/512), fbits(1/512), fbits(1e-5)))
    for i in range(8):
        a('v_readlane_b32 s%d, v9, %d\nv_readlane_b32 s%d, v8, %d' % (68+2*i, 8*i, 69+2*i, 8*i))
    a('v_lshrrev_b32 v4, 2, v1\nv_lshlrev_b32 v4, 10, v4\nv_and_b32 v5, 3, v1\nv_lshl_add_u32 v4, v5, 8, v4\nv_and_b32 v5, 15, v1\nv_lshl_add_u32 v4, v5, 4, v4')
    a('s_lshr_b32 s5, s3, 1\ns_lshl_b32 s5, s5, 14\ns_add_u32 s5, s5, %d\ns_and_b32 s6, s3, 1\ns_lshl_b32 s6, s6, 7\nv_xor_b32 v4, s6, v4\nv_add_u32 v4, s5, v4' % abase)
    a('s_waitcnt vmcnt(%d)' % nafter)
    for i in range(8):
        a('v_mov_b32 v5, s%d' % (69+2*i))
        for q in range(4):
            unpack(a, 6, 7, XR+4*i+q)
            a('v_fma_f32 v6, v6, s%d, v5\nv_fma_f32 v7, v7, s%d, v5' % (68+2*i, 68+2*i))
            a('v_fma_f32 v6, v6, v%d, v%d\nv_fma_f32 v7, v7, v%d, v%d' % (48+2*q, 56+2*q, 49+2*q, 57+2*q))
            a('v_cvt_pk_bf16_f32 v%d, v6, v7' % (XR+4*i+q))
        a('v_xor_b32 v12, %d, v4\nds_write_b128 v12, v[%d:%d]' % (i << 4, XR+4*i, XR+4*i+3))
def afrag_addrs(a, d, abase_sgpr):
    a('v_lshrrev_b32 v5, 4, v1\nv_and_b32 v6, 15, v1\nv_xor_b32 v6, v5, v6\nv_lshlrev_b32 v6, 4, v6\nv_lshl_add_u32 v6, v5, 8, v6')
    for s in range(4):
        a('v_xor_b32 v%d, %d, v6\nv_add_u32 v%d, s%d, v%d' % (d+s, s << 6, d+s, abase_sgpr, d+s))
def wgmap(a, d_hi, d_lo):
    a('s_and_b32 s4, s2, 1\ns_lshl_b32 s4, s4, 2\ns_bfe_u32 s5, s2, 0x20003\ns_add_u32 s%d, s4, s5' % d_lo)
    a('s_bfe_u32 s4, s2, 0x20001\ns_lshl_b32 s4, s4, 3\ns_lshr_b32 s5, s2, 5\ns_add_u32 s%d, s4, s5' % d_hi)
def dma(a, voff, srd_, soff, ldsaddr_s, ld=''):
    a('s_mov_b32 m0, %s\nbuffer_load_dwordx4 v%d, s[%d:%d], %s offen%s lds' % (ldsaddr_s, voff, srd_, srd_+3, soff, ld))

def k1(a):
    prologue(a, 256)
    wgmap(a, 8, 9)
    srd(a, 44, 'x', 0, 2*MB); srd(a, 48, 'ws', WS_ST1, 0x40000); srd(a, 52, 'ws', WS_MOD, 6*2048); srd(a, 56, 'wqkv', 0, 512*3072)
    a('s_lshl_b32 s10, s8, 6')
    ln_prologue_loads(a, 44, 48, 52, 10, 1*2048, 0)
    RING = 65536; SLOT = 24576
    a('v_lshrrev_b32 v5, 3, v1\ns_lshl_b32 s5, s3, 3\nv_add_u32 v5, s5, v5\nv_mul_u32_u24 v64, 3072, v5')
    a('v_bfe_u32 v5, v1, 4, 1\ns_and_b32 s5, s3, 1\ns_lshl_b32 s5, s5, 1\nv_or_b32 v5, s5, v5\nv_lshlrev_b32 v5, 1, v5\nv_and_b32 v6, 7, v1\nv_xor_b32 v5, v5, v6\nv_lshl_add_u32 v64, v5, 4, v64')
    a('s_lshl_b32 s5, s9, 7\nv_add_u32 v64, s5, v64\ns_lshl_b32 s11, s3, 10\ns_add_u32 s11, s11, %d' % RING)
    def issue(c):
        for p in range(3):
            a('s_mov_b32 s5, %d\ns_add_u32 s6, s11, %d' % (c*64*3072 + p*1024, (c % 4)*SLOT + p*8192))
            dma(a, 64, 56, 's5', 's6')
    for c in range(3): issue(c)
    stamp(a, 2)
    ln_prologue_compute(a, 0, 9)
    stamp(a, 3)
    a('s_and_b32 s5, s3, 1\ns_lshl_b32 s5, s5, 15')
    afrag_addrs(a, 65, 5)
    a('v_lshrrev_b32 v5, 4, v1\nv_bfe_u32 v6, v1, 2, 2\nv_lshl_add_u32 v7, v5, 3, v6\nv_lshlrev_b32 v7, 7, v7')
    a('v_bfe_u32 v6, v1, 3, 1\nv_and_b32 v5, 1, v5\nv_lshl_or_b32 v5, v5, 1, v6\ns_lshr_b32 s5, s3, 1\nv_xor_b32 v5, s5, v5\nv_lshl_add_u32 v7, v5, 5, v7')
    a('v_and_b32 v5, 3, v1\nv_lshl_add_u32 v7, v5, 3, v7\nv_add_u32 v69, %d, v7\nv_add_u32 v70, %d, v7' % (RING, RING+2*SLOT))
    ACC = 72
    for r in range(24): a('v_mov_b32 v%d, 0' % (ACC+r))
    AF = 96; BF = 112
    for c in range(8):
        a('s_waitcnt vmcnt(%d) lgkmcnt(0)\ns_barrier' % (6 if c < 6 else (7-c)*3))
        if c+3 < 8: issue(c+3)
        for ks in range(2):
            st = 2*c+ks
            for rt in range(2):
                a('ds_read_b128 v[%d:%d], v%d offset:%d' % (AF+ks*8+rt*4, AF+ks*8+rt*4+3, 65+(st & 3), (st >> 2)*4096+(st & 3)*1024+rt*16384))
            for p in range(3):
                for h in range(2):
                    d = BF+ks*12+p*4+2*h
                    a('ds_read_b64_tr_b16 v[%d:%d], v%d offset:%d' % (d, d+1, 69+((c % 4) >> 1), (c & 1)*SLOT+p*8192+ks*4096+h*512))
        for ks in range(2):
            a('s_waitcnt lgkmcnt(%d)' % (8 if ks == 0 else 0))
            for p in range(3):
                for rt in range(2):
                    A = vr(AF+ks*8+rt*4, 4); B = vr(BF+ks*12+p*4, 4); D = vr(ACC+p*8+rt*4, 4)
                    if p < 2: a('v_mfma_f32_16x16x32_bf16 %s, %s, %s, %s' % (D, B, A, D))
                    else: a('v_mfma_f32_16x16x32_bf16 %s, %s, %s, %s' % (D, A, B, D))
    stamp(a, 4)
    srd(a, 60, 'ws', WS_Q, 6*MB); srd(a, 64, 'ws', WS_KMAX, 32*64*4)
    a('s_lshl_b32 s5, s9, 2\ns_lshr_b32 s6, s3, 1\ns_add_u32 s5, s5, s6\ns_lshl_b32 s5, s5, 6\ns_lshl_b32 s6, s8, 1\ns_add_u32 s5, s5, s6\ns_and_b32 s6, s3, 1\ns_add_u32 s5, s5, s6')
    a('s_lshl_b32 s6, s5, 10\ns_lshl_b32 s7, s5, 2\nv_lshlrev_b32 v2, 4, v1')
    for r in range(8): a('v_mul_f32 v%d, %s, v%d' % (ACC+r, fbits(0.25*1.4426950408889634), ACC+r))
    for rt in range(2):
        k = ACC+8+rt*4
        a('v_mul_f32 v%d, v%d, v%d' % (8+rt, k, k))
        for e in range(1, 4): a('v_fmac_f32 v%d, v%d, v%d' % (8+rt, k+e, k+e))
    for rt in range(2): red_xor16(a, 8+rt, 6)
    for rt in range(2): red_xor32(a, 8+rt, 6)
    a('v_max_f32 v8, v8, v9')
    for m in (QP1, QP2, 'row_half_mirror', 'row_mirror'): dpp_add(a, 8, m, 'v_max_f32')
    for p in range(3):
        b = ACC+p*8; d = 16+4*p
        a('v_cvt_pk_bf16_f32 v%d, v%d, v%d\nv_cvt_pk_bf16_f32 v%d, v%d, v%d\nv_cvt_pk_bf16_f32 v%d, v%d, v%d\nv_cvt_pk_bf16_f32 v%d, v%d, v%d' % (d, b, b+1, d+1, b+2, b+3, d+2, b+4, b+5, d+3, b+6, b+7))
        sw = 'v_permlane16_swap_b32' if p < 2 else 'v_permlane32_swap_b32'
        a('%s v%d, v%d\n%s v%d, v%d' % (sw, d, d+2, sw, d+1, d+3))
        a('s_add_u32 s4, s6, %d\nbuffer_store_dwordx4 v[%d:%d], v2, s[60:63], s4 offen%s' % (p*2*MB, d, d+3, SC))
    a('v_cmp_eq_u32 vcc, 0, v1\ns_and_saveexec_b64 s[12:13], vcc\nv_mov_b32 v9, 0\nbuffer_store_dword v8, v9, s[64:67], s7 offen%s' % SC)
    a('s_mov_b64 exec, -1'); stamp(a, 14); stamp_rt(a, 15); a('s_endpgm')

KERNELS = []
def build(kernels, path):
    hdr = open('cdna_kernels/%s.s.ref' % NAME).read().split('\n')
    head = [l for l in hdr if l.startswith(';') and '@launch' not in l and 'Override' not in l and 'grid=ceil' not in l]
    head = head[:head.index([l for l in head if 'd_ws' in l][0])+1]
    out = list(head)
    for (lab, fn, lds, vg) in kernels:
        out.append('; @launch kernel=%s grid=(256,1,1) block=(512,1,1) lds=%d' % (lab, lds))
    out += ['.amdgcn_target "amdgcn-amd-amdhsa--gfx950"', '.text']
    tot = 0
    for (lab, fn, lds, vg) in kernels:
        a = Asm(); a.uid = 1000*len(out); KID[0] = kernels.index((lab, fn, lds, vg))
        fn(a)
        body, nn = fix_hazards(a.l); tot += nn
        out += ['.globl %s' % lab, '.p2align 8', '.type %s,@function' % lab, lab + ':'] + body
    out += ['.section .rodata,"a"']
    for (lab, fn, lds, vg) in kernels:
        out += ['.p2align 6', '.amdhsa_kernel %s' % lab, '  .amdhsa_next_free_vgpr %d' % vg, '  .amdhsa_next_free_sgpr 102',
                '  .amdhsa_accum_offset %d' % vg, '  .amdhsa_group_segment_fixed_size 0', '  .amdhsa_kernarg_size 104',
                '  .amdhsa_user_sgpr_count 2', '  .amdhsa_user_sgpr_kernarg_segment_ptr 1', '  .amdhsa_system_sgpr_workgroup_id_x 1', '.end_amdhsa_kernel']
    open(path, 'w').write('\n'.join(out) + '\n')
    print('written', path, 'lines', len(out), 'nops', tot)
```

```python
from gen import *
import gen
def red_max_wave(a, r, t):
    for m in (QP1, QP2, 'row_half_mirror', 'row_mirror'): dpp_add(a, r, m, 'v_max_f32')
    a('v_mov_b32 v%d, v%d\nv_permlane16_swap_b32 v%d, v%d\nv_max_f32 v%d, v%d, v%d' % (t, r, r, t, r, r, t))
    a('v_mov_b32 v%d, v%d\nv_permlane32_swap_b32 v%d, v%d\nv_max_f32 v%d, v%d, v%d' % (t, r, r, t, r, r, t))
def k2(a):
    prologue(a, 256)
    a('s_and_b32 s4, s2, 7\ns_lshl_b32 s4, s4, 2\ns_bfe_u32 s5, s2, 0x20003\ns_add_u32 s8, s4, s5\ns_lshr_b32 s9, s2, 5')
    srd(a, 44, 'ws', WS_Q, 6*MB); srd(a, 48, 'ws', WS_KMAX, 32*64*4); srd(a, 52, 'ws', WS_O, 2*MB)
    Q = 4; NEG = 16; S = [32, 48]; O = 64; KF = [80, 84]; VF = [[88, 92], [96, 100]]
    a('v_lshlrev_b32 v2, 4, v1\ns_lshl_b32 s10, s8, 16')
    a('s_lshl_b32 s5, s9, 3\ns_add_u32 s5, s5, s3\ns_lshl_b32 s5, s5, 10\ns_add_u32 s5, s5, s10')
    a('buffer_load_dwordx4 v[%d:%d], v2, s[44:47], s5 offen%s' % (Q, Q+3, gen.SC))
    a('v_lshlrev_b32 v3, 2, v1\ns_lshl_b32 s5, s8, 8\nbuffer_load_dword v8, v3, s[48:51], s5 offen%s' % gen.SC)
    a('s_lshl_b32 s11, s3, 10\ns_add_u32 s12, s10, s11\ns_add_u32 s12, s12, %d' % (2*MB))
    for j in range(8):
        a('s_add_u32 s5, s12, %d\ns_add_u32 s6, s11, %d' % (j*8192, j*8192)); dma(a, 2, 44, 's5', 's6', gen.SC)
        a('s_add_u32 s5, s12, %d\ns_add_u32 s6, s11, %d' % (j*8192 + 2*MB, j*8192 + 65536)); dma(a, 2, 44, 's5', 's6', gen.SC)
    for r in range(16): a('v_mov_b32 v%d, 0\nv_mov_b32 v%d, 0' % (NEG+r, O+r))
    a('v_and_b32 v9, 27, v1\nv_cmp_eq_u32 vcc, 16, v9\nv_mov_b32 v10, 0x3f803f80\nv_mov_b32 v11, 0\ns_nop 0\nv_cndmask_b32 v9, v11, v10, vcc')
    for r in range(88, 104): a('v_mov_b32 v%d, v9' % r)
    a('v_mov_b32 v12, v2\nv_and_b32 v13, 15, v1\nv_lshlrev_b32 v13, 4, v13\nv_lshrrev_b32 v14, 5, v1\nv_lshl_add_u32 v13, v14, 8, v13\nv_add_u32 v13, 0x10000, v13')
    a('s_mov_b32 s14, 0x0000ffff\ns_mov_b32 s15, 0x0000ffff')
    a('s_waitcnt vmcnt(16)')
    red_max_wave(a, 8, 14)
    a('v_mov_b32 v10, 0')
    for q in range(4):
        unpack(a, 14, 15, Q+q); a('v_fmac_f32 v10, v14, v14\nv_fmac_f32 v10, v15, v15')
    red_xor32(a, 10, 14)
    a('v_mul_f32 v10, v10, v8\nv_mul_f32 v10, %s, v10\nv_mov_b32 v11, %s\nv_cmp_gt_f32 vcc, v10, v11' % (fbits(1.05), fbits(4096.0)))
    a('s_nop 1\ns_cmp_lg_u64 vcc, 0\ns_cselect_b32 s5, 1, 0\nv_mov_b32 v10, s5\ns_lshl_b32 s6, s3, 2\ns_add_u32 s6, s6, 0x22000\nv_mov_b32 v11, s6\nds_write_b32 v11, v10')
    a('s_waitcnt vmcnt(12) lgkmcnt(0)\ns_barrier')
    a('v_and_b32 v11, 7, v1\nv_lshlrev_b32 v11, 2, v11\nv_add_u32 v11, 0x22000, v11\nds_read_b32 v10, v11\ns_waitcnt lgkmcnt(0)\nv_cmp_ne_u32 vcc, 0, v10')
    a('s_cbranch_vccz k2_fast')
    a('s_waitcnt vmcnt(0)\ns_barrier\nv_mov_b32 v8, 0xff800000\nv_mov_b32 v14, v12\ns_mov_b32 s5, 0')
    a.label('k2_slow')
    a('ds_read_b128 v[80:83], v14\ns_waitcnt lgkmcnt(0)\nv_mfma_f32_32x32x16_bf16 v[32:47], v[80:83], v[4:7], v[16:31]')
    for r in range(0, 16, 2): a('v_max3_f32 v8, v8, v%d, v%d' % (32+r, 33+r))
    a('v_add_u32 v14, 1024, v14\ns_add_u32 s5, s5, 1\ns_cmp_lt_u32 s5, 64\ns_cbranch_scc1 k2_slow')
    a('v_mov_b32 v14, v8\nv_permlane32_swap_b32 v8, v14\nv_max_f32 v8, v8, v14\nv_sub_f32 v8, 0, v8')
    for r in range(16): a('v_mov_b32 v%d, v8' % (NEG+r))
    a.label('k2_fast')
    stamp(a, 2)
    def rdK(buf, off): a('ds_read_b128 v[%d:%d], v12 offset:%d' % (KF[buf], KF[buf]+3, off))
    def rdV(buf, off):
        a('s_mov_b64 exec, s[14:15]')
        for g in range(2): a('ds_read_b128 v[%d:%d], v13 offset:%d' % (VF[buf][g], VF[buf][g]+3, off+g*512))
        a('s_mov_b64 exec, -1')
    def mS(buf, kb): a('v_mfma_f32_32x32x16_bf16 v[%d:%d], v[%d:%d], v[%d:%d], v[%d:%d]' % (S[buf], S[buf]+15, KF[kb], KF[kb]+3, Q, Q+3, NEG, NEG+15))
    rdK(0, 0); rdK(1, 1024); rdV(0, 0)
    a('s_waitcnt lgkmcnt(0)'); mS(0, 0)
    a('s_mov_b32 s13, 0')
    a.label('k2_loop')
    a('s_cmp_eq_u32 s13, 1\ns_cbranch_scc0 k2_ns\ns_waitcnt vmcnt(0)\ns_barrier'); a.label('k2_ns')
    for t in range(8):
        b = t & 1; s = S[b]
        a('s_waitcnt lgkmcnt(0)')
        mS(1-b, 1-b)
        rdK(b, (t+2)*1024); rdV(1-b, (t+1)*1024)
        for hf in range(2):
            for r in range(8*hf, 8*hf+8): a('v_exp_f32 v%d, v%d' % (s+r, s+r))
            for r in range(4): a('v_cvt_pk_bf16_f32 v%d, v%d, v%d' % (s+8*hf+r, s+8*hf+2*r, s+8*hf+2*r+1))
            a('v_mfma_f32_32x32x16_bf16 v[%d:%d], v[%d:%d], v[%d:%d], v[%d:%d]' % (O, O+15, VF[b][hf], VF[b][hf]+3, s+8*hf, s+8*hf+3, O, O+15))
    a('v_add_u32 v12, 8192, v12\nv_add_u32 v13, 8192, v13\ns_add_u32 s13, s13, 1\ns_cmp_lt_u32 s13, 8\ns_cbranch_scc1 k2_loop')
    stamp(a, 4)
    a('s_waitcnt lgkmcnt(0)\nv_rcp_f32 v8, v%d' % (O+8))
    for r in range(8): a('v_mul_f32 v%d, v%d, v8' % (O+r, O+r))
    for r in range(4): a('v_cvt_pk_bf16_f32 v%d, v%d, v%d' % (16+r, O+2*r, O+2*r+1))
    a('v_bfe_u32 v9, v1, 4, 1\nv_lshlrev_b32 v9, 14, v9\nv_lshrrev_b32 v10, 5, v1\nv_lshl_add_u32 v9, v10, 8, v9\nv_and_b32 v10, 15, v1\nv_lshl_add_u32 v9, v10, 4, v9')
    a('s_lshl_b32 s5, s9, 4\ns_lshl_b32 s6, s3, 1\ns_add_u32 s5, s5, s6\ns_lshl_b32 s5, s5, 14\ns_lshr_b32 s6, s8, 1\ns_lshl_b32 s6, s6, 10\ns_add_u32 s5, s5, s6\ns_and_b32 s6, s8, 1\ns_lshl_b32 s6, s6, 9\ns_add_u32 s5, s5, s6')
    a('buffer_store_dwordx4 v[16:19], v9, s[52:55], s5 offen%s' % gen.SC)
    stamp(a, 6); stamp_rt(a, 7); stamp_out(a, 2); a('s_endpgm')

def resid_epilogue(a, ACC, sres, sout, smod, modoff, sst, do_stats):
    a('v_and_b32 v5, 15, v1\ns_and_b32 s5, s3, 3\ns_lshl_b32 s5, s5, 4\ns_lshl_b32 s6, s8, 6\ns_add_u32 s5, s5, s6\nv_add_u32 v5, s5, v5\nv_mov_b32 v11, v5')
    a('v_bfe_u32 v6, v1, 4, 1\nv_lshrrev_b32 v7, 5, v1\nv_lshlrev_b32 v6, 4, v6\nv_lshl_add_u32 v6, v7, 3, v6')
    a('s_lshr_b32 s5, s3, 2\ns_lshl_b32 s5, s5, 5\ns_lshl_b32 s6, s9, 6\ns_add_u32 s5, s5, s6\nv_add_u32 v6, s5, v6')
    a('v_lshlrev_b32 v10, 10, v5\nv_lshl_add_u32 v10, v6, 1, v10\nv_lshlrev_b32 v6, 2, v6')
    a('buffer_load_dwordx4 v[12:15], v10, s[%d:%d], 0 offen%s' % (sres, sres+3, gen.SC if sres != 44 else ''))
    a('s_mov_b32 s5, %d\nbuffer_load_dwordx4 v[16:19], v6, s[%d:%d], s5 offen%s\nbuffer_load_dwordx4 v[20:23], v6, s[%d:%d], s5 offen offset:16%s' % (modoff, smod, smod+3, gen.SC, smod, smod+3, gen.SC))
    return
def resid_finish(a, ACC, sout, sst, do_stats):
    for r in range(4): a('v_permlane16_swap_b32 v%d, v%d' % (ACC+r, ACC+4+r))
    a('s_waitcnt vmcnt(0)')
    for q in range(4):
        unpack(a, 6, 7, 12+q)
        a('v_fma_f32 v6, v%d, v%d, v6\nv_fma_f32 v7, v%d, v%d, v7\nv_cvt_pk_bf16_f32 v%d, v6, v7' % (ACC+2*q, 16+2*q, ACC+2*q+1, 17+2*q, 12+q))
    a('buffer_store_dwordx4 v[12:15], v10, s[%d:%d], 0 offen%s' % (sout, sout+3, gen.SC if do_stats else ''))
    if do_stats:
        a('v_mov_b32 v8, 0\nv_mov_b32 v9, 0')
        for q in range(4):
            unpack(a, 6, 7, 12+q)
            a('v_add_f32 v8, v8, v6\nv_fmac_f32 v9, v6, v6\nv_add_f32 v8, v8, v7\nv_fmac_f32 v9, v7, v7')
        for r in (8, 9): red_xor16(a, r, 6)
        for r in (8, 9): red_xor32(a, r, 6)
        a('s_lshr_b32 s5, s3, 2\ns_lshl_b32 s6, s9, 1\ns_add_u32 s5, s5, s6\ns_lshl_b32 s5, s5, 3\nv_lshlrev_b32 v5, 7, v11')
        a('v_cmp_gt_u32 vcc, 16, v1\ns_and_saveexec_b64 s[12:13], vcc\nbuffer_store_dwordx2 v[8:9], v5, s[%d:%d], s5 offen%s\ns_mov_b64 exec, s[12:13]' % (sst, sst+3, gen.SC))
def wpanel_dma_addr(a, d, stride, fmode):
    a('v_lshrrev_b32 v5, 3, v1\ns_lshl_b32 s5, s3, 3\nv_add_u32 v5, s5, v5\nv_mul_u32_u24 v%d, %d, v5' % (d, stride))
    if fmode == 'm1': a('v_bfe_u32 v5, v1, 4, 2')
    else: a('v_bfe_u32 v5, v1, 4, 1\ns_and_b32 s5, s3, 1\ns_lshl_b32 s5, s5, 1\nv_or_b32 v5, s5, v5')
    a('v_lshlrev_b32 v5, 1, v5\nv_and_b32 v6, 7, v1\nv_xor_b32 v5, v5, v6\nv_lshl_add_u32 v%d, v5, 4, v%d\ns_lshl_b32 s5, s9, 7\nv_add_u32 v%d, s5, v%d' % (d, d, d, d))
def wpanel_rd_addr(a, d, fmode, base):
    a('v_lshrrev_b32 v5, 4, v1\nv_bfe_u32 v6, v1, 2, 2')
    if fmode == 'm1':
        a('v_lshrrev_b32 v7, 1, v5\nv_lshlrev_b32 v7, 4, v7\nv_and_b32 v8, 1, v5\nv_lshl_add_u32 v7, v8, 2, v7\nv_add_u32 v7, v7, v6\nv_bfe_u32 v8, v7, 1, 2')
    else:
        a('v_lshl_add_u32 v7, v5, 3, v6\nv_bfe_u32 v8, v1, 3, 1\nv_and_b32 v9, 1, v5\nv_lshl_or_b32 v8, v9, 1, v8')
    a('v_lshlrev_b32 v7, 7, v7\nv_and_b32 v9, 3, v1\nv_lshl_add_u32 v7, v9, 3, v7\nv_add_u32 v7, %d, v7\ns_lshr_b32 s5, s3, 2\ns_lshl_b32 s5, s5, 1' % base)
    a('v_xor_b32 v9, s5, v8\nv_lshl_add_u32 v%d, v9, 5, v7\ns_add_u32 s5, s5, 1\nv_xor_b32 v9, s5, v8\nv_lshl_add_u32 v%d, v9, 5, v7' % (d, d+1))
def k3(a):
    prologue(a, 256)
    wgmap(a, 8, 9)
    srd(a, 44, 'x', 0, 2*MB); srd(a, 48, 'ws', WS_O, 2*MB); srd(a, 52, 'ws', WS_MOD, 6*2048); srd(a, 56, 'wo', 0, 512*1024)
    srd(a, 60, 'ws', WS_X1, 2*MB); srd(a, 64, 'ws', WS_ST2, 0x40000)
    wpanel_dma_addr(a, 24, 1024, 'm1')
    a('v_lshlrev_b32 v2, 4, v1\ns_lshl_b32 s10, s8, 16\ns_lshl_b32 s11, s3, 10')
    a('s_lshr_b32 s4, s3, 1\ns_lshl_b32 s4, s4, 14\ns_and_b32 s5, s3, 1\ns_lshl_b32 s5, s5, 11\ns_add_u32 s12, s4, s5')
    for c in range(4):
        for j in range(2):
            a('s_add_u32 s6, s12, %d\ns_add_u32 s5, s6, s10' % (c*4096+j*1024)); dma(a, 2, 48, 's5', 's6', gen.SC)
        for j in range(2):
            a('s_mov_b32 s5, %d\ns_add_u32 s6, s11, %d' % ((c*128+j*64)*1024, 65536+(c*128+j*64)*128)); dma(a, 24, 56, 's5', 's6')
    resid_epilogue(a, 32, 44, 60, 52, 2*2048, 64, True)
    wpanel_rd_addr(a, 25, 'm1', 65536)
    a('s_and_b32 s5, s3, 3\ns_lshl_b32 s5, s5, 14\nv_add_u32 v27, s5, v2')
    ACC = 32
    stamp(a, 2)
    for r in range(8): a('v_mov_b32 v%d, 0' % (ACC+r))
    AF = 40; BF = 56
    for c in range(4):
        a('s_waitcnt vmcnt(%d)\ns_barrier' % (3+4*(3-c)))
        for ks in range(4):
            st = 4*c+ks
            a('ds_read_b128 v[%d:%d], v27 offset:%d' % (AF+4*ks, AF+4*ks+3, st*1024))
            for t in range(2):
                for h in range(2):
                    d = BF+ks*8+t*4+2*h
                    a('ds_read_b64_tr_b16 v[%d:%d], v%d offset:%d' % (d, d+1, 25+t, st*4096+h*1024))
        for ks in range(4):
            a('s_waitcnt lgkmcnt(%d)' % (5*(3-ks)))
            for t in range(2):
                a('v_mfma_f32_16x16x32_bf16 v[%d:%d], v[%d:%d], v[%d:%d], v[%d:%d]' % (ACC+4*t, ACC+4*t+3, BF+ks*8+t*4, BF+ks*8+t*4+3, AF+4*ks, AF+4*ks+3, ACC+4*t, ACC+4*t+3))
    stamp(a, 4)
    resid_finish(a, ACC, 60, 64, True)
    stamp(a, 6); stamp_rt(a, 7); stamp_out(a, 3); a('s_endpgm')
def rowA_dma_addr(a, d, stride):
    for j in range(2):
        a('v_lshrrev_b32 v5, 4, v1\ns_lshl_b32 s5, s3, 3\ns_add_u32 s5, s5, %d\nv_add_u32 v5, s5, v5\nv_mul_u32_u24 v%d, %d, v5' % (4*j, d+j, stride))
        a('v_and_b32 v5, 15, v5\nv_and_b32 v6, 15, v1\nv_xor_b32 v5, v5, v6\nv_lshl_add_u32 v%d, v5, 4, v%d' % (d+j, d+j))
def k6(a):
    prologue(a, 256)
    wgmap(a, 8, 9)
    srd(a, 44, 'ws', WS_X1, 2*MB); srd(a, 48, 'ws', WS_U, 2048*1792); srd(a, 52, 'ws', WS_MOD, 6*2048); srd(a, 56, 'wout', 0, 896*1024)
    srd(a, 60, 'out', 0, 2*MB)
    NS = 5; SL = 32768
    wpanel_dma_addr(a, 24, 1024, 'nat')
    rowA_dma_addr(a, 28, 1792)
    a('s_mul_i32 s10, s8, %d\ns_lshl_b32 s11, s3, 10\ns_lshl_b32 s12, s3, 11' % (64*1792))
    def issue(c):
        sl = (c % NS)*SL
        for j in range(2):
            a('s_add_u32 s5, s10, %d\ns_add_u32 s6, s12, %d' % (c*256, sl+j*1024)); dma(a, 28+j, 48, 's5', 's6', gen.SC)
        for j in range(2):
            a('s_mov_b32 s5, %d\ns_add_u32 s6, s11, %d' % ((c*128+j*64)*1024, sl+16384+j*8192)); dma(a, 24, 56, 's5', 's6')
    for c in range(4): issue(c)
    wpanel_rd_addr(a, 25, 'nat', 16384)
    a('v_and_b32 v5, 15, v1\nv_lshrrev_b32 v6, 4, v1\nv_xor_b32 v6, v5, v6\nv_lshlrev_b32 v6, 4, v6\nv_lshl_add_u32 v6, v5, 8, v6\ns_and_b32 s5, s3, 3\ns_lshl_b32 s5, s5, 12\nv_add_u32 v6, s5, v6')
    for ks in range(4): a('v_xor_b32 v%d, %d, v6' % (64+ks, ks << 6))
    ACC = 32
    for r in range(8): a('v_mov_b32 v%d, 0' % (ACC+r))
    AF = 40; BF = 72
    stamp(a, 2)
    cur = 0
    for c in range(7):
        rem = min(6, c+3) - c
        a('s_waitcnt vmcnt(%d)\ns_barrier' % (4*rem + (3 if c >= 5 else 0)))
        if c+4 < 7: issue(c+4)
        if c == 4: resid_epilogue(a, 32, 44, 60, 52, 5*2048, 64, False)
        sl = (c % NS)*SL
        if sl - cur >= 32768 or sl < cur:
            dl = sl - cur
            for r in (25, 26, 64, 65, 66, 67): a('v_add_u32 v%d, %s, v%d' % (r, hex(dl & 0xffffffff), r))
            cur = sl
        o = sl - cur
        for ks in range(4):
            a('ds_read_b128 v[%d:%d], v%d offset:%d' % (AF+4*ks, AF+4*ks+3, 64+ks, o))
            for t in range(2):
                for h in range(2):
                    d = BF+ks*8+t*4+2*h
                    a('ds_read_b64_tr_b16 v[%d:%d], v%d offset:%d' % (d, d+1, 25+t, o+ks*4096+h*512))
        for ks in range(4):
            a('s_waitcnt lgkmcnt(%d)' % (5*(3-ks)))
            for t in range(2):
                a('v_mfma_f32_16x16x32_bf16 v[%d:%d], v[%d:%d], v[%d:%d], v[%d:%d]' % (ACC+4*t, ACC+4*t+3, BF+ks*8+t*4, BF+ks*8+t*4+3, AF+4*ks, AF+4*ks+3, ACC+4*t, ACC+4*t+3))
    stamp(a, 4)
    resid_finish(a, ACC, 60, 64, False)
    stamp(a, 6); stamp_rt(a, 7); stamp_out(a, 6); a('s_endpgm')
def extra_kernels():
    ks = [('k2_kernel', k2, 0x22100, 128), ('k3_kernel', k3, 131072, 128)]
    try:
        from gen3 import k4, k5
        ks += [('k4_kernel', k4, 163840, 256), ('k5_kernel', k5, 163840, 256), ('k6_kernel', k6, 163840, 128)]
    except ImportError as e: print(e)
    return ks
```

```python
from gen import *
from gen2 import rowA_dma_addr
import gen
class VM:
    def __init__(s): s.q = []
    def issue(s, tag): s.q.append(tag)
    def wait(s, done):
        last = -1
        for i, t in enumerate(s.q):
            if done(t): last = i
        n = len(s.q) - 1 - last
        return min(n, 63)
def gelu(a, r, t0, t1):
    c1 = -2*1.4426950408889634*0.7978845608028654; c2 = c1*0.044715
    a('v_mul_f32 v%d, v%d, v%d\nv_fma_f32 v%d, v%d, s%d, v%d' % (t0, r, r, t0, t0, 90, t1))
    a('v_mul_f32 v%d, v%d, v%d\nv_exp_f32 v%d, v%d\nv_add_f32 v%d, 1.0, v%d\nv_rcp_f32 v%d, v%d\nv_mul_f32 v%d, v%d, v%d' % (t0, t0, r, t0, t0, t0, t0, t0, t0, r, r, t0))
def gelu_consts(a, t1):
    c1 = -2*1.4426950408889634*0.7978845608028654; c2 = c1*0.044715
    a('s_mov_b32 s90, %s\nv_mov_b32 v%d, %s' % (fbits(c2), t1, fbits(c1)))
def pair_col_addr(a, d):
    a('v_bfe_u32 v5, v1, 4, 1\nv_lshlrev_b32 v5, 5, v5\nv_lshrrev_b32 v6, 5, v1\nv_lshl_add_u32 v5, v6, 4, v5\ns_lshr_b32 s5, s3, 2\ns_lshl_b32 s5, s5, 7\nv_add_u32 v%d, s5, v5' % d)
def store_pairs(a, src, vaddr, srd_, soff, sc):
    for p in range(2):
        b = src+4*p
        a('v_permlane16_swap_b32 v%d, v%d\nv_permlane16_swap_b32 v%d, v%d' % (b, b+2, b+1, b+3))
    a('buffer_store_dwordx4 v[%d:%d], v%d, s[%d:%d], %s offen%s' % (src, src+3, vaddr, srd_, srd_+3, soff, sc))
    a('s_lshr_b32 s5, s3, 2\nv_bfe_u32 v5, v1, 4, 1\nv_and_b32 v5, s5, v5\nv_cmp_eq_u32 vcc, 0, v5\ns_and_saveexec_b64 s[12:13], vcc')
    a('buffer_store_dwordx4 v[%d:%d], v%d, s[%d:%d], %s offen offset:64%s\ns_mov_b64 exec, s[12:13]' % (src+4, src+7, vaddr, srd_, srd_+3, soff, sc))
def k4(a):
    prologue(a, 256)
    wgmap(a, 8, 9)
    srd(a, 44, 'ws', WS_X1, 2*MB); srd(a, 48, 'ws', WS_ST2, 0x40000); srd(a, 52, 'ws', WS_MOD, 6*2048); srd(a, 56, 'ws', WS_WIN, 512*3584)
    srd(a, 60, 'ws', WS_ST3, 0x40000); srd(a, 64, 'ws', WS_FLAG, 0x8000)
    a('s_lshl_b32 s10, s8, 6')
    ln_prologue_loads(a, 44, 48, 52, 10, 4*2048, 3*2048, ld=gen.SC)
    RING = 65536; NP = 84
    vm = VM()
    a('v_lshlrev_b32 v2, 4, v1\ns_lshl_b32 s14, s3, 10\ns_mul_i32 s15, s9, %d\ns_add_u32 s15, s15, s14\ns_add_u32 s14, s14, %d' % (2*512*224, RING))
    st = {'i': 0}
    def issue_to(ilim):
        while st['i'] <= min(27, ilim):
            dma(a, 2, 56, 's15', 's14', gen.SC)
            a('s_add_u32 s15, s15, 8192\ns_add_u32 s14, s14, 8192\ns_cmp_ge_u32 s14, %d\ns_cselect_b32 s5, %d, 0\ns_sub_u32 s14, s14, s5' % (RING+NP*1024, NP*1024))
            vm.issue(st['i']); st['i'] += 1
    issue_to(76//8)
    ln_prologue_compute(a, 0, st['i'])
    stamp(a, 2)
    a('s_waitcnt lgkmcnt(0)\ns_barrier')
    a('s_and_b32 s5, s3, 3\ns_lshl_b32 s5, s5, 14')
    afrag_addrs(a, 65, 5)
    for stp in range(16):
        a('ds_read_b128 v[%d:%d], v%d offset:%d' % (128+4*stp, 131+4*stp, 65+(stp & 3), (stp >> 2)*4096+(stp & 3)*1024))
    a('v_lshrrev_b32 v5, 5, v1\nv_lshlrev_b32 v5, 4, v5\nv_bfe_u32 v6, v1, 4, 1\nv_lshl_add_u32 v5, v6, 2, v5\nv_bfe_u32 v6, v1, 2, 2\nv_add_u32 v5, v5, v6\nv_mul_u32_u24 v5, 224, v5')
    a('v_and_b32 v6, 3, v1\nv_lshl_add_u32 v5, v6, 3, v5\ns_lshr_b32 s5, s3, 2\ns_lshl_b32 s5, s5, 7\ns_add_u32 s5, s5, %d\nv_add_u32 v69, s5, v5\nv_add_u32 v70, %d, v69' % (RING, 3*14336))
    Z = [72, 88]
    for r in range(32): a('v_mov_b32 v%d, 0' % (72+r))
    BF = 192
    gelu_consts(a, 104)
    for c in range(16):
        need = (14*c+13)//8
        a('s_waitcnt vmcnt(%d) lgkmcnt(0)\ns_barrier' % vm.wait(lambda t: t <= need))
        issue_to((14*c+76)//8)
        sl = c % 6
        for ks in range(2):
            for t in range(4):
                for h in range(2):
                    d = BF+ks*16+t*4+2*h
                    a('ds_read_b64_tr_b16 v[%d:%d], v%d offset:%d' % (d, d+1, 69+sl//3, (sl % 3)*14336+ks*7168+h*1792+t*32))
        for ks in range(2):
            a('s_waitcnt lgkmcnt(%d)' % (8 if ks == 0 else 0))
            stp = (2*c+ks) % 16
            for t in range(4):
                D = vr(Z[c//8]+4*t, 4)
                a('v_mfma_f32_16x16x32_bf16 %s, %s, %s, %s' % (D, vr(BF+ks*16+t*4, 4), vr(128+4*stp, 4), D))
        if c == 7:
            stamp(a, 3)
            for r in range(16): gelu(a, 72+r, 106+(r & 1), 104)
            a('v_mov_b32 v8, 0\nv_mov_b32 v9, 0')
            for r in range(12): a('v_add_f32 v8, v8, v%d\nv_fmac_f32 v9, v%d, v%d' % (72+r, 72+r, 72+r))
            a('s_cmp_ge_u32 s3, 4\ns_cbranch_scc1 k4_s3')
            for r in range(12, 16): a('v_add_f32 v8, v8, v%d\nv_fmac_f32 v9, v%d, v%d' % (72+r, 72+r, 72+r))
            a.label('k4_s3')
            for r in (8, 9): red_xor16(a, r, 6)
            for r in (8, 9): red_xor32(a, r, 6)
            a('v_and_b32 v105, 15, v1\ns_and_b32 s5, s3, 3\ns_lshl_b32 s5, s5, 4\ns_add_u32 s5, s5, s10\nv_add_u32 v105, s5, v105')
            a('s_lshr_b32 s5, s3, 2\ns_lshl_b32 s6, s9, 1\ns_add_u32 s5, s5, s6\ns_lshl_b32 s5, s5, 3\nv_lshlrev_b32 v5, 7, v105')
            a('v_cmp_gt_u32 vcc, 16, v1\ns_and_saveexec_b64 s[12:13], vcc\nbuffer_store_dwordx2 v[8:9], v5, s[60:63], s5 offen sc0 sc1\ns_mov_b64 exec, s[12:13]')
            a('s_waitcnt vmcnt(0)')
            vm.q = []
            a('v_mov_b32 v5, 1\ns_lshl_b32 s5, s8, 8\nv_mov_b32 v6, s5\nv_cmp_eq_u32 vcc, 0, v1\ns_and_saveexec_b64 s[12:13], vcc\nbuffer_atomic_add v5, v6, s[64:67], 0 offen sc1\ns_mov_b64 exec, s[12:13]')
    stamp(a, 4)
    srd(a, 44, 'ws', WS_Z1, 4*MB); srd(a, 48, 'ws', WS_Z2N, 2048*1792)
    for r in range(16): gelu(a, 88+r, 106+(r & 1), 104)
    for r in range(8): a('v_cvt_pk_bf16_f32 v%d, v%d, v%d' % (112+r, 88+2*r, 89+2*r))
    a('s_lshl_b32 s5, s8, 3\ns_add_u32 s5, s5, s9\ns_lshl_b32 s5, s5, 3\ns_add_u32 s5, s5, s3\ns_lshl_b32 s5, s5, 11')
    a('buffer_store_dwordx4 v[112:115], v2, s[44:47], s5 offen%s\nbuffer_store_dwordx4 v[116:119], v2, s[44:47], s5 offen offset:1024%s' % (gen.SC, gen.SC))
    a('s_lshl_b32 s5, s8, 8\nv_mov_b32 v6, s5\ns_mov_b32 s6, 0')
    a.label('k4_poll')
    a('buffer_load_dword v5, v6, s[64:67], 0 offen sc0 sc1\ns_waitcnt vmcnt(0)\nv_readfirstlane_b32 s7, v5\ns_add_u32 s6, s6, 1\ns_cmp_gt_u32 s6, 0x40000\ns_cbranch_scc1 k4_pd\ns_cmp_lt_u32 s7, 64\ns_cbranch_scc1 k4_poll')
    a.label('k4_pd')
    stamp(a, 5)
    a('v_lshrrev_b32 v5, 4, v1\nv_lshlrev_b32 v5, 5, v5\nv_lshl_add_u32 v5, v105, 7, v5')
    a('buffer_load_dwordx4 v[8:11], v5, s[60:63], 0 offen sc0 sc1\nbuffer_load_dwordx4 v[12:15], v5, s[60:63], 0 offen offset:16 sc0 sc1')
    pair_col_addr(a, 16)
    a('v_lshrrev_b32 v5, 1, v105\nv_and_b32 v5, 4, v5\nv_lshlrev_b32 v6, 1, v105\nv_and_b32 v6, 8, v6\nv_and_b32 v7, 0xfffffff3, v105\nv_or3_b32 v5, v5, v6, v7\nv_mul_u32_u24 v5, 224, v5\nv_add_u32 v16, v16, v5\ns_mul_i32 s14, s9, %d' % (2048*224))
    a('s_waitcnt vmcnt(0)\nv_add_f32 v8, v8, v10\nv_add_f32 v9, v9, v11\nv_add_f32 v12, v12, v14\nv_add_f32 v13, v13, v15\nv_add_f32 v8, v8, v12\nv_add_f32 v9, v9, v13')
    for r in (8, 9): red_xor16(a, r, 6)
    for r in (8, 9): red_xor32(a, r, 6)
    a('v_mul_f32 v8, %s, v8\nv_mul_f32 v9, %s, v9\nv_fma_f32 v9, -v8, v8, v9\nv_max_f32 v9, 0, v9\nv_add_f32 v9, %s, v9\nv_rsq_f32 v9, v9\ns_nop 0\nv_mul_f32 v8, v8, v9\nv_sub_f32 v8, 0, v8' % (fbits(1/896), fbits(1/896), fbits(1e-5)))
    for r in range(16): a('v_fma_f32 v%d, v%d, v9, v8' % (72+r, 72+r))
    for r in range(8): a('v_cvt_pk_bf16_f32 v%d, v%d, v%d' % (112+r, 72+2*r, 73+2*r))
    store_pairs(a, 112, 16, 48, 's14', gen.SC)
    stamp(a, 6); stamp_rt(a, 7); stamp_out(a, 4); a('s_endpgm')
EXP = {}
def k5(a):
    prologue(a, 256)
    wgmap(a, 8, 9)
    if EXP.get('same'): a('s_mov_b32 s8, 0\ns_mov_b32 s9, 0')
    if EXP.get('sameA'): a('s_mov_b32 s8, 0')
    if EXP.get('sameB'): a('s_mov_b32 s9, 0')
    srd(a, 44, 'wsp', 0, 2048*4096); srd(a, 48, 'ws', WS_Z2N, 2048*1792); srd(a, 52, 'ws', WS_Z1, 4*MB); srd(a, 56, 'bsp', 0, 4096); srd(a, 60, 'ws', WS_U, 2048*1792)
    vm = VM()
    BR = 65536; NP = 84
    rowA_dma_addr(a, 28, 4096)
    a('s_lshl_b32 s10, s8, 18\ns_lshl_b32 s12, s3, 11')
    a('v_lshlrev_b32 v2, 4, v1\ns_mul_i32 s14, s3, 3584\ns_mul_i32 s15, s9, %d\ns_add_u32 s15, s15, s14\ns_add_u32 s14, s14, %d' % (2048*224, BR))
    def issueB(c):
        if c > 15 or EXP.get('noB'): return
        for j in range(4):
            a('s_add_u32 s5, s15, %d\ns_add_u32 s6, s14, %d' % (c*28672+j*1024, (c % 3)*28672+j*1024))
            if j == 3: a('s_mov_b32 exec_hi, 0')
            dma(a, 2, 48, 's5', 's6', gen.SC)
            if j == 3: a('s_mov_b32 exec_hi, -1')
            vm.issue(('B', c))
    def issueA(c):
        if c > 15 or EXP.get('noA'): return
        for j in range(2):
            a('s_add_u32 s5, s10, %d\ns_add_u32 s6, s12, %d' % (c*256, (c % 4)*16384+j*1024)); dma(a, 28+j, 44, 's5', 's6')
            vm.issue(('A', c))
    for c in range(3):
        issueA(c); issueB(c)
    a('s_lshl_b32 s5, s8, 3\ns_add_u32 s5, s5, s9\ns_lshl_b32 s5, s5, 3\ns_add_u32 s5, s5, s3\ns_lshl_b32 s5, s5, 11')
    a('buffer_load_dwordx4 v[112:115], v2, s[52:55], s5 offen%s\nbuffer_load_dwordx4 v[116:119], v2, s[52:55], s5 offen offset:1024%s' % (gen.SC, gen.SC)); vm.issue('z'); vm.issue('z')
    a('v_and_b32 v105, 15, v1\ns_and_b32 s5, s3, 3\ns_lshl_b32 s5, s5, 4\ns_lshl_b32 s6, s8, 6\ns_add_u32 s5, s5, s6\nv_add_u32 v105, s5, v105\nv_lshlrev_b32 v5, 1, v105\nbuffer_load_ushort v104, v5, s[56:59], 0 offen'); vm.issue('z')
    a('v_and_b32 v5, 15, v1\nv_lshrrev_b32 v6, 4, v1\ns_lshr_b32 s5, s3, 1\ns_lshl_b32 s5, s5, 2\nv_add_u32 v6, s5, v6\nv_xor_b32 v6, v5, v6\nv_lshlrev_b32 v6, 4, v6\nv_lshl_add_u32 v6, v5, 8, v6\ns_and_b32 s5, s3, 1\ns_lshl_b32 s5, s5, 13\nv_add_u32 v64, s5, v6')
    a('v_lshrrev_b32 v5, 5, v1\nv_lshlrev_b32 v5, 4, v5\nv_bfe_u32 v6, v1, 4, 1\nv_lshl_add_u32 v5, v6, 2, v5\nv_bfe_u32 v6, v1, 2, 2\nv_add_u32 v5, v5, v6\ns_lshr_b32 s5, s3, 1\ns_lshl_b32 s5, s5, 5\nv_add_u32 v5, s5, v5\nv_mul_u32_u24 v5, 224, v5')
    a('v_and_b32 v6, 3, v1\nv_lshl_add_u32 v5, v6, 3, v5')
    for s in range(3): a('v_add_u32 v%d, %d, v5' % (65+s, BR+s*28672))
    stamp(a, 2)
    ACC = 128
    for r in range(56): a('v_mov_b32 v%d, 0' % (ACC+r))
    AF = 68; BF = 76
    for c in range(16):
        a('s_waitcnt vmcnt(%d) lgkmcnt(0)\ns_barrier' % vm.wait(lambda t: t[0] in 'AB' and t[1] <= c))
        if c in (0, 8): stamp(a, 3 if c == 0 else 5)
        if c >= 1: issueB(c+2)
        issueA(c+3)
        if EXP.get('nocomp'): continue
        for rt in range(2): a('ds_read_b128 v[%d:%d], v64 offset:%d' % (AF+4*rt, AF+4*rt+3, (c % 4)*16384+rt*4096))
        for t in range(7):
            for h in range(2):
                a('ds_read_b64_tr_b16 v[%d:%d], v%d offset:%d' % (BF+4*t+2*h, BF+4*t+2*h+1, 65+c % 3, h*1792+t*32))
        for t in range(7):
            if t in (0, 2, 4): a('s_waitcnt lgkmcnt(%d)' % ({0: 10, 2: 6, 4: 0}[t]))
            for rt in range(2):
                D = vr(ACC+(rt*7+t)*4, 4)
                a('v_mfma_f32_16x16x32_bf16 %s, %s, %s, %s' % (D, vr(BF+4*t, 4), vr(AF+4*rt, 4), D))
    stamp(a, 4)
    a('s_barrier\ns_lshr_b32 s5, s3, 1\ns_mul_i32 s5, s5, %d\ns_and_b32 s6, s3, 1\ns_mul_i32 s6, s6, %d\ns_add_u32 s5, s5, s6\nv_add_u32 v5, s5, v2' % (28*1024, 14*1024))
    for j in range(14): a('ds_write_b128 v5, v[%d:%d] offset:%d' % (ACC+4*j, ACC+4*j+3, j*1024))
    a('s_waitcnt lgkmcnt(0)\ns_barrier')
    a('s_and_b32 s5, s3, 3\ns_mul_i32 s5, s5, %d\ns_lshr_b32 s6, s3, 2\ns_lshl_b32 s6, s6, 12\ns_add_u32 s5, s5, s6\nv_add_u32 v5, s5, v2\nv_add_u32 v6, %d, v5' % (7*1024, 2*28*1024))
    for kq in range(4):
        for j in range(4):
            d = 128+(kq*4+j)*4
            a('ds_read_b128 v[%d:%d], v%d offset:%d' % (d, d+3, 5+(kq >> 1), (kq & 1)*28*1024+j*1024))
    pair_col_addr(a, 16)
    a('v_mul_u32_u24 v5, 1792, v105\nv_add_u32 v16, v16, v5\ns_mul_i32 s14, s9, 224\ns_waitcnt vmcnt(0) lgkmcnt(0)\nv_lshlrev_b32 v104, 16, v104')
    for r in range(16):
        a('v_add_f32 v%d, v%d, v%d\nv_add_f32 v%d, v%d, v%d\nv_add_f32 v%d, v%d, v%d' % (128+r, 128+r, 144+r, 160+r, 160+r, 176+r, 128+r, 128+r, 160+r))
    for r in range(16):
        rnd_bf16(a, 128+r); a('v_add_f32 v%d, v%d, v104' % (128+r, 128+r)); rnd_bf16(a, 128+r)
    for q in range(8):
        unpack(a, 6, 7, 112+q)
        a('v_mul_f32 v6, v6, v%d\nv_mul_f32 v7, v7, v%d\nv_cvt_pk_bf16_f32 v%d, v6, v7' % (128+2*q, 129+2*q, 112+q))
    store_pairs(a, 112, 16, 60, 's14', gen.SC)
    stamp(a, 6); stamp_rt(a, 7); stamp_out(a, 5); a('s_endpgm')
```

```python
from gen import *
from gen2 import *
from gen3 import VM, gelu, gelu_consts, pair_col_addr, store_pairs
import gen
SC = ' sc1'
import os
NOWSP = os.environ.get('NOWSP')
WF = 64
LSC = os.environ.get('LSC', ' sc1')
CA, CD, CE, CZ, CF = 0, 8, 40, 72, 80
SRD_FLAG = 84
def stc(a, k, e):
    if os.environ.get('STC', 'A') == k: stampw(a, 32 if e else 40); stampc(a, 56 if e else 48)
def publish(a, base, sidx, st=None):
    l = a.uniq('pub')
    if st: stamp(a, st)
    a('s_waitcnt vmcnt(0)')
    if st: stamp(a, st+1)
    a('s_barrier\ns_cmp_eq_u32 s3, 0\ns_cbranch_scc0 %s' % l)
    a('s_add_u32 s5, s%d, %d\ns_lshl_b32 s5, s5, 8\nv_mov_b32 v5, 1\nv_mov_b32 v6, s5\ns_mov_b64 exec, 1\nbuffer_atomic_add v5, v6, s[84:87], 0 offen sc1\ns_mov_b64 exec, -1' % (sidx, base))
    a.label(l)
def poll(a, base, sidx, target):
    l = a.uniq('poll'); d = a.uniq('pd')
    a('s_cmp_eq_u32 s3, 0\ns_cbranch_scc0 %s' % d)
    a('s_add_u32 s5, s%d, %d\ns_lshl_b32 s5, s5, 8\nv_mov_b32 v6, s5\ns_mov_b32 s6, 0' % (sidx, base))
    a.label(l)
    a('buffer_load_dword v5, v6, s[84:87], 0 offen sc0 sc1\ns_waitcnt vmcnt(0)\nv_readfirstlane_b32 s7, v5\ns_add_u32 s6, s6, 1\ns_cmp_gt_u32 s6, 0x20000\ns_cbranch_scc1 %s\ns_cmp_lt_u32 s7, %d\ns_cbranch_scc1 %s' % (d, target, l))
    a.label(d)
def pipeline(a, steps):
    def dosync(st):
        if st.get('sync'):
            n, fn = st['sync']
            a('s_waitcnt vmcnt(%d) lgkmcnt(0)\ns_barrier' % n())
            if fn: fn()
        else: a('s_waitcnt lgkmcnt(0)')
    dosync(steps[0]); steps[0]['reads'](0)
    for s in range(len(steps)):
        if s+1 < len(steps):
            dosync(steps[s+1]); steps[s+1]['reads']((s+1) & 1)
        else: a('s_waitcnt lgkmcnt(0)')
        steps[s]['mfma'](s & 1)
def pipeline2(a, steps, la=1, npre=1, rpg=3, ipos=None):
    nb = la+1; N = len(steps)
    def dosync(st):
        if st.get('sync'):
            n, fn = st['sync']
            a('s_waitcnt vmcnt(%d)\n%s' % (n(), 's_nop 0' if os.environ.get('NOBAR') else 's_barrier'))
            return fn() if fn else []
        return []
    nread = {}
    for s in range(min(la, N)):
        if s == 0: a('s_waitcnt lgkmcnt(0)')
        I = dosync(steps[s]); R = steps[s]['reads'](s % nb); nread[s] = len(R)
        for x in R+I: a(x)
    for s in range(N):
        pend = sum(nread[k] for k in range(s+1, min(s+la, N)))
        a('s_waitcnt lgkmcnt(%d)' % pend)
        M = steps[s]['mfma'](s % nb)
        for x in M[:npre]: a(x)
        rest = M[npre:]; R = []; I = []
        if s+la < N:
            I = dosync(steps[s+la]); R = steps[s+la]['reads']((s+la) % nb); nread[s+la] = len(R)
        ng = len(rest)
        per = {}
        rg = max(1, min(ng, -(-len(R)//rpg)))
        for k, x in enumerate(R): per.setdefault(min(k//rpg, ng), []).append(x)
        g0 = min(rg, ng)
        for k, x in enumerate(I): per.setdefault(min(ipos[k] if ipos else g0+k, ng), []).append(x)
        for i, m in enumerate(rest):
            for x in per.get(i, []): a(x)
            a(m)
        for x in per.get(ng, []): a(x)
        if steps[s].get('post'): steps[s]['post']()
def m16(D, A, B): return 'v_mfma_f32_16x16x32_bf16 %s, %s, %s, %s' % (vr(D, 4), vr(A, 4), vr(B, 4), vr(D, 4))
def dmas(voff, srd_, soff, ldsaddr_s, ld=''): return 's_mov_b32 m0, %s\nbuffer_load_dwordx4 v%d, s[%d:%d], %s offen%s lds' % (ldsaddr_s, voff, srd_, srd_+3, soff, ld)
def mf16(a, D, A, B): a('v_mfma_f32_16x16x32_bf16 %s, %s, %s, %s' % (vr(D, 4), vr(A, 4), vr(B, 4), vr(D, 4)))

def attn(a):
    srd(a, 44, 'ws', WS_Q, 6*MB); srd(a, 48, 'ws', WS_KMAX, 32*64*4); srd(a, 52, 'ws', WS_O, 2*MB); srd(a, 56, 'wsp', 0, 2048*4096)
    Q = 4; NEG = 16; S = [32, 48]; O = 64; KF = [80, 84]; VF = [[88, 92], [96, 100]]
    a('v_lshlrev_b32 v2, 4, v1\ns_lshl_b32 s10, s88, 16')
    a('s_lshl_b32 s5, s89, 3\ns_add_u32 s5, s5, s3\ns_lshl_b32 s5, s5, 10\ns_add_u32 s5, s5, s10')
    a('buffer_load_dwordx4 v[%d:%d], v2, s[44:47], s5 offen' % (Q, Q+3))
    a('v_lshlrev_b32 v3, 2, v1\ns_lshl_b32 s5, s88, 8\nbuffer_load_dword v8, v3, s[48:51], s5 offen')
    a('s_lshl_b32 s11, s3, 10\ns_add_u32 s12, s10, s11\ns_add_u32 s12, s12, %d' % (2*MB))
    for j in range(8):
        a('s_add_u32 s5, s12, %d\ns_add_u32 s6, s11, %d' % (j*8192, j*8192)); dma(a, 2, 44, 's5', 's6')
        a('s_add_u32 s5, s12, %d\ns_add_u32 s6, s11, %d' % (j*8192 + 2*MB, j*8192 + 65536)); dma(a, 2, 44, 's5', 's6')
    for r in range(16): a('v_mov_b32 v%d, 0\nv_mov_b32 v%d, 0' % (NEG+r, O+r))
    a('v_and_b32 v9, 27, v1\nv_cmp_eq_u32 vcc, 16, v9\nv_mov_b32 v10, 0x3f803f80\nv_mov_b32 v11, 0\ns_nop 0\nv_cndmask_b32 v9, v11, v10, vcc')
    for r in range(88, 104): a('v_mov_b32 v%d, v9' % r)
    a('v_mov_b32 v12, v2\nv_and_b32 v13, 15, v1\nv_lshlrev_b32 v13, 4, v13\nv_lshrrev_b32 v14, 5, v1\nv_lshl_add_u32 v13, v14, 8, v13\nv_add_u32 v13, 0x10000, v13')
    a('s_mov_b32 s14, 0x0000ffff\ns_mov_b32 s15, 0x0000ffff')
    a('v_and_b32 v104, 15, v1\ns_lshl_b32 s5, s8, 6\ns_bfe_u32 s6, s3, 0x10001\ns_lshl_b32 s6, s6, 5\ns_add_u32 s5, s5, s6\nv_add_u32 v104, s5, v104\nv_lshlrev_b32 v104, 12, v104')
    a('v_lshrrev_b32 v105, 4, v1\nv_lshl_add_u32 v104, v105, 4, v104\ns_and_b32 s5, s3, 1\ns_lshr_b32 s6, s3, 2\ns_lshl_b32 s6, s6, 1\ns_or_b32 s5, s5, s6\ns_lshl_b32 s5, s5, 10\nv_add_u32 v104, s5, v104')
    srd(a, 60, 'wo', 0, 512*1024); srd(a, 64, 'wout', 0, 896*1024); srd(a, 68, 'ws', WS_WIN, 512*3584)
    a('v_lshrrev_b32 v105, 3, v1\ns_lshl_b32 s5, s3, 3\nv_add_u32 v105, s5, v105\nv_lshlrev_b32 v105, 10, v105\nv_and_b32 v106, 7, v1\nv_lshl_add_u32 v105, v106, 4, v105\ns_lshl_b32 s5, s9, 7\nv_add_u32 v105, s5, v105')
    a('s_and_b32 s91, s8, 7')
    a('s_waitcnt vmcnt(16)')
    red_max_wave(a, 8, 14)
    a('v_mov_b32 v10, 0')
    for q in range(4):
        unpack(a, 14, 15, Q+q); a('v_fmac_f32 v10, v14, v14\nv_fmac_f32 v10, v15, v15')
    red_xor32(a, 10, 14)
    a('v_mul_f32 v10, v10, v8\nv_mul_f32 v10, %s, v10\nv_mov_b32 v11, %s\nv_cmp_gt_f32 vcc, v10, v11' % (fbits(1.05), fbits(4096.0)))
    a('s_nop 1\ns_cmp_lg_u64 vcc, 0\ns_cselect_b32 s5, 1, 0\nv_mov_b32 v10, s5\ns_lshl_b32 s6, s3, 2\ns_add_u32 s6, s6, 0x22000\nv_mov_b32 v11, s6\nds_write_b32 v11, v10')
    a('s_waitcnt vmcnt(12) lgkmcnt(0)\ns_barrier')
    a('v_and_b32 v11, 7, v1\nv_lshlrev_b32 v11, 2, v11\nv_add_u32 v11, 0x22000, v11\nds_read_b32 v10, v11\ns_waitcnt lgkmcnt(0)\nv_cmp_ne_u32 vcc, 0, v10')
    a('s_cbranch_vccz k2_fast')
    a('s_waitcnt vmcnt(0)\ns_barrier\nv_mov_b32 v8, 0xff800000\nv_mov_b32 v14, v12\ns_mov_b32 s5, 0')
    a.label('k2_slow')
    a('ds_read_b128 v[80:83], v14\ns_waitcnt lgkmcnt(0)\nv_mfma_f32_32x32x16_bf16 v[32:47], v[80:83], v[4:7], v[16:31]')
    for r in range(0, 16, 2): a('v_max3_f32 v8, v8, v%d, v%d' % (32+r, 33+r))
    a('v_add_u32 v14, 1024, v14\ns_add_u32 s5, s5, 1\ns_cmp_lt_u32 s5, 64\ns_cbranch_scc1 k2_slow')
    a('v_mov_b32 v14, v8\nv_permlane32_swap_b32 v8, v14\nv_max_f32 v8, v8, v14\nv_sub_f32 v8, 0, v8')
    for r in range(16): a('v_mov_b32 v%d, v8' % (NEG+r))
    a.label('k2_fast')
    stamp(a, 2); stc(a, 'A', 0)
    def rdK(buf, off): a('ds_read_b128 v[%d:%d], v12 offset:%d' % (KF[buf], KF[buf]+3, off))
    def rdV(buf, off):
        a('s_mov_b64 exec, s[14:15]')
        for g in range(2): a('ds_read_b128 v[%d:%d], v13 offset:%d' % (VF[buf][g], VF[buf][g]+3, off+g*512))
        a('s_mov_b64 exec, -1')
    def mS(buf, kb): a('v_mfma_f32_32x32x16_bf16 v[%d:%d], v[%d:%d], v[%d:%d], v[%d:%d]' % (S[buf], S[buf]+15, KF[kb], KF[kb]+3, Q, Q+3, NEG, NEG+15))
    lds_ = []
    lds_.append(lambda: a('s_lshl_b32 s5, s91, 16\nbuffer_load_dwordx4 v[108:111], v105, s[60:63], s5 offen'))
    lds_.append(lambda: a('s_mul_i32 s5, s91, %d\nbuffer_load_dwordx4 v[108:111], v105, s[64:67], s5 offen' % (112*1024)))
    lds_.append(lambda: a('s_add_u32 s5, s5, 0xc000\nbuffer_load_dwordx4 v[108:111], v105, s[64:67], s5 offen'))
    for q in range(4):
        lds_.append(lambda q=q: a(('s_mul_i32 s5, s9, %d\ns_mul_i32 s6, s91, 28672\ns_add_u32 s5, s5, s6\ns_mul_i32 s6, s3, 3584\ns_add_u32 s73, s5, s6\n' % (2*512*224) if q == 0 else '') + 'buffer_load_dwordx4 v[108:111], v2, s[68:71], s73 offen offset:%d' % (q*1024)))
    for n in range(32):
        rt = n >> 4; j = (n >> 1) & 7; f = n & 1; d = 128+(rt*16+2*j+f)*4
        lds_.append(lambda rt=rt, j=j, f=f, d=d: a(('s_add_u32 s5, s91, %d\ns_and_b32 s5, s5, 7\ns_lshl_b32 s5, s5, 7\ns_add_u32 s5, s5, %d\n' % (j, rt*16*4096) if f == 0 else '') + 'buffer_load_dwordx4 v[%d:%d], v104, s[56:59], s5 offen offset:%d%s' % (d, d+3, f*WF, os.environ.get('WNT', ''))))
    sched = {}
    if not NOWSP:
        lds_ = lds_[7:] + lds_[:7]
        for k, fn in enumerate(lds_): sched.setdefault(8 + (k*54)//39, []).append(fn)
    def body(it):
        def ex(r0, r1):
            for r in range(r0, r1): a('v_exp_f32 v%d, v%d' % (r, r))
        def cv(d, n=4):
            for r in range(n): a('v_cvt_pk_bf16_f32 v%d, v%d, v%d' % (d+r, d+2*r, d+2*r+1))
        def pv(vf, p): a('v_mfma_f32_32x32x16_bf16 v[%d:%d], v[%d:%d], v[%d:%d], v[%d:%d]' % (O, O+15, vf, vf+3, p, p+3, O, O+15))
        for t in range(8):
            b = t & 1; s = S[b]; n_ = S[1-b]
            ex(s, s+2)
            pv(VF[1-b][1], n_+8)
            ex(s+2, s+7)
            a('s_waitcnt lgkmcnt(0)')
            mS(1-b, 1-b)
            rdK(b, (t+2)*1024); rdV(1-b, (t+1)*1024)
            for fn in sched.get(it*8+t, []): fn()
            ex(s+7, s+8); cv(s); ex(s+8, s+12)
            pv(VF[b][0], s)
            ex(s+12, s+16); cv(s+8)
        a('v_add_u32 v12, 8192, v12\nv_add_u32 v13, 8192, v13')
    rdK(0, 0); rdK(1, 1024); rdV(0, 0)
    for r in range(4): a('v_mov_b32 v%d, 0' % (S[1]+8+r))
    a('s_waitcnt lgkmcnt(0)'); mS(0, 0)
    body(0)
    a('s_waitcnt vmcnt(0)\ns_barrier')
    for it in range(1, 8): body(it)
    a('s_nop 1\nv_mfma_f32_32x32x16_bf16 v[%d:%d], v[%d:%d], v[%d:%d], v[%d:%d]' % (O, O+15, VF[1][1], VF[1][1]+3, S[1]+8, S[1]+11, O, O+15))
    stamp(a, 3); stc(a, 'A', 1)
    a('s_waitcnt lgkmcnt(0)\nv_rcp_f32 v8, v%d' % (O+8))
    for r in range(8): a('v_mul_f32 v%d, v%d, v8' % (O+r, O+r))
    for r in range(4): a('v_cvt_pk_bf16_f32 v%d, v%d, v%d' % (16+r, O+2*r, O+2*r+1))
    a('v_bfe_u32 v9, v1, 4, 1\nv_lshlrev_b32 v9, 14, v9\nv_lshrrev_b32 v10, 5, v1\nv_lshl_add_u32 v9, v10, 8, v9\nv_and_b32 v10, 15, v1\nv_lshl_add_u32 v9, v10, 4, v9')
    a('s_lshl_b32 s5, s89, 4\ns_lshl_b32 s6, s3, 1\ns_add_u32 s5, s5, s6\ns_lshl_b32 s5, s5, 14\ns_lshr_b32 s6, s88, 1\ns_lshl_b32 s6, s6, 10\ns_add_u32 s5, s5, s6\ns_and_b32 s6, s88, 1\ns_lshl_b32 s6, s6, 9\ns_add_u32 s5, s5, s6')
    a('buffer_store_dwordx4 v[16:19], v9, s[52:55], s5 offen sc1')
    publish(a, CA, 89, 16)

def phaseD(a):
    srd(a, 44, 'x', 0, 2*MB); srd(a, 48, 'ws', WS_O, 2*MB); srd(a, 52, 'ws', WS_MOD, 6*2048); srd(a, 56, 'wo', 0, 512*1024)
    srd(a, 60, 'ws', WS_X1, 2*MB); srd(a, 64, 'ws', WS_ST2, 0x40000)
    wpanel_dma_addr(a, 24, 1024, 'm1')
    a('s_lshl_b32 s10, s8, 16\ns_lshl_b32 s11, s3, 10\ns_lshr_b32 s90, s8, 2')
    def issueW():
        for c in range(8):
            a('s_mov_b32 s5, %d\ns_add_u32 s6, s11, %d' % (c*64*1024, 65536+c*64*128)); dma(a, 24, 56, 's5', 's6')
    l1 = a.uniq('dw'); l2 = a.uniq('dw')
    a('s_cmp_eq_u32 s3, 0\ns_cbranch_scc1 %s' % l1); issueW(); a('s_branch %s' % l2)
    a.label(l1); stamp(a, 26); poll(a, CA, 90, 32); stamp(a, 24); a('v_mov_b32 v3, s6\nbuffer_store_dword v3, off, s[96:99], 0 offset:120' if gen.INSTR else ''); issueW(); stamp(a, 25); a.label(l2)
    resid_epilogue(a, 32, 44, 60, 52, 2*2048, 64, True)
    a('s_barrier')
    stamp(a, 4)
    a('s_lshr_b32 s4, s3, 1\ns_lshl_b32 s4, s4, 14\ns_and_b32 s5, s3, 1\ns_lshl_b32 s5, s5, 11\ns_add_u32 s12, s4, s5')
    for c in range(4):
        for j in range(2):
            a('s_add_u32 s6, s12, %d\ns_add_u32 s5, s6, s10' % (c*4096+j*1024)); dma(a, 2, 48, 's5', 's6', LSC)
    wpanel_rd_addr(a, 25, 'm1', 65536)
    a('s_and_b32 s5, s3, 3\ns_lshl_b32 s5, s5, 14\nv_add_u32 v27, s5, v2')
    ACC = 32
    for r in range(8): a('v_mov_b32 v%d, 0' % (ACC+r))
    BUF = [40, 64, 96]
    steps = []
    for s in range(8):
        def reads(b, s=s):
            L = []
            for k in range(2):
                st = 2*s+k
                L.append('ds_read_b128 v[%d:%d], v27 offset:%d' % (BUF[b]+4*k, BUF[b]+4*k+3, st*1024))
                for t in range(2):
                    for h in range(2):
                        d = BUF[b]+8+k*8+t*4+2*h
                        L.append('ds_read_b64_tr_b16 v[%d:%d], v%d offset:%d' % (d, d+1, 25+t, st*4096+h*1024))
            return L
        def mf(b): return [m16(ACC+4*t, BUF[b]+8+k*8+t*4, BUF[b]+4*k) for k in range(2) for t in range(2)]
        steps.append(dict(sync=((lambda s=s: 2*(3-s//2)), None) if s % 2 == 0 else None, reads=reads, mfma=mf))
    pipeline2(a, steps, la=2)
    stamp(a, 5)
    resid_finish(a, ACC, 60, 64, True)
    publish(a, CD, 8, 18)

def phaseE(a):
    srd(a, 44, 'ws', WS_X1, 2*MB); srd(a, 48, 'ws', WS_ST2, 0x40000); srd(a, 52, 'ws', WS_MOD, 6*2048); srd(a, 56, 'ws', WS_WIN, 512*3584)
    srd(a, 60, 'ws', WS_ST3, 0x40000)
    RING = 65536; NS = 6
    vm = VM()
    a('s_mul_i32 s14, s3, 1792\ns_mul_i32 s15, s9, %d\ns_add_u32 s15, s15, s14\ns_add_u32 s14, s14, %d\ns_lshl_b32 s10, s8, 6' % (2*512*224, RING))
    a('s_mov_b32 s12, -1\ns_mov_b32 s13, 0x0000ffff')
    def issueL(c, track=True):
        L = []
        if c > 15: return L
        for j in range(2):
            x = 's_add_u32 s5, s15, %d\ns_add_u32 m0, s14, %d\ns_nop 0\n' % (c*14336, (c % NS)*14336) if j == 0 else 's_mov_b64 exec, s[12:13]\n'
            x += 'buffer_load_dwordx4 v2, s[56:59], s5 offen offset:%d lds' % (j*1024)
            if j == 1: x += '\ns_mov_b64 exec, -1'
            L.append(x)
            if track: vm.issue(c)
        return L
    def issue(c, track=True):
        for x in issueL(c, track): a(x)
    l1 = a.uniq('ew'); l2 = a.uniq('ew')
    a('s_cmp_eq_u32 s3, 0\ns_cbranch_scc1 %s' % l1)
    for c in range(NS): issue(c, False)
    a('s_branch %s' % l2)
    a.label(l1); poll(a, CD, 8, 8)
    for c in range(NS): issue(c)
    a.label(l2)
    a('s_barrier')
    stamp(a, 6)
    ln_prologue_loads(a, 44, 48, 52, 10, 4*2048, 3*2048, ld=SC)
    for i in range(13): vm.issue(-1)
    ln_prologue_compute(a, 0, 0)
    stamp(a, 7); stc(a, 'E', 0)
    a('s_and_b32 s5, s3, 3\ns_lshl_b32 s5, s5, 14')
    afrag_addrs(a, 64, 5)
    a('v_lshrrev_b32 v5, 5, v1\nv_lshlrev_b32 v5, 4, v5\nv_bfe_u32 v6, v1, 4, 1\nv_lshl_add_u32 v5, v6, 2, v5\nv_bfe_u32 v6, v1, 2, 2\nv_add_u32 v5, v5, v6\nv_mul_u32_u24 v5, 224, v5')
    a('v_and_b32 v6, 3, v1\nv_lshl_add_u32 v5, v6, 3, v5\ns_lshr_b32 s5, s3, 2\ns_lshl_b32 s5, s5, 7\ns_add_u32 s5, s5, %d\nv_add_u32 v68, s5, v5\nv_add_u32 v69, %d, v68' % (RING, 3*14336))
    Z = [72, 88]
    for r in range(32): a('v_mov_b32 v%d, 0' % (72+r))
    gelu_consts(a, 70)
    BUF = [12, 32, 104]
    def mid():
        for r in range(16): gelu(a, 72+r, 8+(r & 1), 70)
        a('v_mov_b32 v8, 0\nv_mov_b32 v9, 0')
        for r in range(12): a('v_add_f32 v8, v8, v%d\nv_fmac_f32 v9, v%d, v%d' % (72+r, 72+r, 72+r))
        l = a.uniq('es'); a('s_cmp_ge_u32 s3, 4\ns_cbranch_scc1 %s' % l)
        for r in range(12, 16): a('v_add_f32 v8, v8, v%d\nv_fmac_f32 v9, v%d, v%d' % (72+r, 72+r, 72+r))
        a.label(l)
        for r in (8, 9): red_xor16(a, r, 6)
        for r in (8, 9): red_xor32(a, r, 6)
        a('v_and_b32 v71, 15, v1\ns_and_b32 s5, s3, 3\ns_lshl_b32 s5, s5, 4\ns_add_u32 s5, s5, s10\nv_add_u32 v71, s5, v71')
        a('s_lshr_b32 s5, s3, 2\ns_lshl_b32 s6, s9, 1\ns_add_u32 s5, s5, s6\ns_lshl_b32 s5, s5, 3\nv_lshlrev_b32 v5, 7, v71')
        a('s_mov_b64 exec, 0xffff\nbuffer_store_dwordx2 v[8:9], v5, s[60:63], s5 offen sc0 sc1\ns_mov_b64 exec, -1')
    def mid2():
        a('s_add_u32 s5, s8, %d\ns_lshl_b32 s5, s5, 8\nv_mov_b32 v5, 1\nv_mov_b32 v6, s5\ns_mov_b64 exec, 1\nbuffer_atomic_add v5, v6, s[84:87], 0 offen sc1\ns_mov_b64 exec, -1' % CE)
    steps = []
    for s in range(32):
        c = s >> 1; ks = s & 1
        def reads(b, s=s, c=c, ks=ks):
            st = s & 15
            L = ['ds_read_b128 v[%d:%d], v%d offset:%d' % (BUF[b], BUF[b]+3, 64+(st & 3), (st >> 2)*4096+(st & 3)*1024)]
            sl = c % NS
            for t in range(4):
                for h in range(2):
                    d = BUF[b]+4+t*4+2*h
                    L.append('ds_read_b64_tr_b16 v[%d:%d], v%d offset:%d' % (d, d+1, 68+sl//3, (sl % 3)*14336+ks*7168+h*1792+t*32))
            return L
        def mf(b, s=s): return [m16(Z[s >> 4]+4*t, BUF[b]+4+t*4, BUF[b]) for t in range(4)]
        def post(s=s):
            if s == 15: mid(); vm.issue('st')
            if s == 22: mid2()
        def iss(c=c): return issueL(c-2+NS) if c >= 2 and not os.environ.get('ENODMA') else []
        def nv(c=c):
            return vm.wait(lambda t: (t == 'st' and c >= 12) or (t != 'st' and t <= c))
        steps.append(dict(sync=(nv, iss) if ks == 0 else None, reads=reads if not os.environ.get('ENORD') else (lambda b: []), mfma=mf, post=post if not os.environ.get('ENOPOST') else None))
    pipeline2(a, steps, la=2)
    stamp(a, 8); stc(a, 'E', 1)
    for r in range(16): gelu(a, 88+r, 8+(r & 1), 70)
    for r in range(8): a('v_cvt_pk_bf16_f32 v%d, v%d, v%d' % (112+r, 88+2*r, 89+2*r))
    poll(a, CE, 8, 64)
    a('s_barrier')
    stamp(a, 9)
    srd(a, 48, 'ws', WS_Z2N, 2048*1792)
    a('v_lshrrev_b32 v5, 4, v1\nv_lshlrev_b32 v5, 5, v5\nv_lshl_add_u32 v5, v71, 7, v5')
    a('buffer_load_dwordx4 v[8:11], v5, s[60:63], 0 offen sc0 sc1\nbuffer_load_dwordx4 v[12:15], v5, s[60:63], 0 offen offset:16 sc0 sc1')
    pair_col_addr(a, 16)
    a('v_and_b32 v5, 0xfffffff3, v71\nv_bfe_u32 v6, v71, 3, 1\nv_lshl_or_b32 v5, v6, 2, v5\nv_bfe_u32 v6, v71, 2, 1\nv_lshl_or_b32 v5, v6, 3, v5')
    a('v_mul_u32_u24 v5, 224, v5\nv_add_u32 v16, v16, v5\ns_mul_i32 s14, s9, %d' % (2048*224))
    a('s_waitcnt vmcnt(0)\nv_add_f32 v8, v8, v10\nv_add_f32 v9, v9, v11\nv_add_f32 v12, v12, v14\nv_add_f32 v13, v13, v15\nv_add_f32 v8, v8, v12\nv_add_f32 v9, v9, v13')
    for r in (8, 9): red_xor16(a, r, 6)
    for r in (8, 9): red_xor32(a, r, 6)
    a('v_mul_f32 v8, %s, v8\nv_mul_f32 v9, %s, v9\nv_fma_f32 v9, -v8, v8, v9\nv_max_f32 v9, 0, v9\nv_add_f32 v9, %s, v9\nv_rsq_f32 v9, v9\ns_nop 0\nv_mul_f32 v8, v8, v9\nv_sub_f32 v8, 0, v8' % (fbits(1/896), fbits(1/896), fbits(1e-5)))
    for r in range(16): a('v_fma_f32 v%d, v%d, v9, v8' % (72+r, 72+r))
    for r in range(8): a('v_cvt_pk_bf16_f32 v%d, v%d, v%d' % (104+r, 72+2*r, 73+2*r))
    store_pairs(a, 104, 16, 48, 's14', SC)
    a('v_mov_b32 v120, v71')
    publish(a, CZ, 9, 20)

def phaseF(a):
    srd(a, 48, 'ws', WS_Z2N, 2048*1792); srd(a, 56, 'bsp', 0, 4096); srd(a, 60, 'ws', WS_U, 2048*1792)
    NS = 5
    vm = VM()
    a('s_lshr_b32 s5, s3, 1\ns_mul_i32 s15, s5, %d\ns_mul_i32 s14, s5, 7168\ns_and_b32 s6, s3, 1\ns_lshl_b32 s6, s6, 12\ns_add_u32 s15, s15, s6\ns_add_u32 s14, s14, s6\ns_mul_i32 s6, s9, %d\ns_add_u32 s15, s15, s6\ns_and_b32 s6, s3, 1\ns_sub_u32 s10, s6, 1\ns_mov_b32 s11, s10' % (512*224, 2048*224))
    a('v_lshlrev_b32 v121, 1, v120\nbuffer_load_ushort v121, v121, s[56:59], 0 offen')
    poll(a, CZ, 9, 32)
    a('s_barrier')
    stamp(a, 10); stc(a, 'F', 0)
    a('s_lshl_b32 s7, s91, 1\ns_mul_i32 s7, s7, 7168\ns_add_u32 s7, s7, s15\ns_add_u32 s13, s15, %d' % (16*7168))
    def issueL(c):
        L = []
        if c > 15: return L
        for j in range(4):
            x = ''
            if j == 0: x += 's_lshl_b32 s7, s91, 1\ns_add_u32 s7, s7, %d\ns_and_b32 s7, s7, 15\ns_mul_i32 s7, s7, 7168\ns_add_u32 s7, s7, s15\n' % c
            x += 's_add_u32 s5, s7, %d\ns_add_u32 s6, s14, %d\n' % (j*1024, (c % NS)*28672+j*1024)
            if j == 3: x += 's_mov_b64 exec, s[10:11]\n'
            x += dmas(2, 48, 's5', 's6', LSC)
            if j == 3: x += '\ns_mov_b64 exec, -1'
            if j == 0: x += 's_add_u32 m0, s14, %d\ns_nop 0\n' % ((c % NS)*28672)
            if j == 3: x += 's_mov_b32 exec_hi, 0\n'
            x += 'buffer_load_dwordx4 v2, s[48:51], s7 offen offset:%d%s lds' % (j*1024, LSC)
            if j == 3: x += '\ns_mov_b32 exec_hi, -1\ns_add_u32 s7, s7, 7168\ns_cmp_eq_u32 s7, s13\ns_cselect_b32 s7, s15, s7'
            L.append(x); vm.issue(c)
        return L
    def issue(c):
        for x in issueL(c): a(x)
    for c in range(NS): issue(c)
    a('v_lshrrev_b32 v5, 5, v1\nv_lshlrev_b32 v5, 4, v5\nv_bfe_u32 v6, v1, 4, 1\nv_lshl_add_u32 v5, v6, 2, v5\nv_bfe_u32 v6, v1, 2, 2\nv_add_u32 v5, v5, v6\nv_mul_u32_u24 v5, 224, v5')
    a('v_and_b32 v6, 3, v1\nv_lshl_add_u32 v5, v6, 3, v5\ns_and_b32 s5, s3, 1\ns_lshr_b32 s6, s3, 2\ns_lshl_b32 s6, s6, 1\ns_or_b32 s4, s5, s6\ns_mul_i32 s5, s4, 7168\nv_add_u32 v122, s5, v5\nv_add_u32 v123, %d, v122\nv_add_u32 v124, %d, v122' % (2*28672, 4*28672))
    ACC = 8
    for r in range(56): a('v_mov_b32 v%d, 0' % (ACC+r))
    BUF = [64, 92]
    a('v_lshlrev_b32 v5, 1, v2\ns_lshl_b32 s5, s3, 11\ns_add_u32 s5, s5, %d\nv_add_u32 v125, s5, v5\nds_write_b128 v125, v[112:115]\nds_write_b128 v125, v[116:119] offset:16' % (143360))
    steps = []
    for c in range(16):
        def reads(b, c=c):
            sl = c % NS; L = []
            for t in range(7):
                for h in range(2):
                    d = BUF[b]+4*t+2*h
                    L.append('ds_read_b64_tr_b16 v[%d:%d], v%d offset:%d' % (d, d+1, 122+sl//2, (sl % 2)*28672+h*1792+t*32))
            return L
        def mf(b, c=c): return [m16(ACC+(rt*7+t)*4, BUF[b]+4*t, 128+(rt*16+c)*4) for t in range(7) for rt in range(2)]
        def iss(c=c): return issueL(c-1+NS) if c >= 1 and not os.environ.get('FNODMA') else []
        steps.append(dict(sync=((lambda c=c: vm.wait(lambda t: t <= c)), iss), reads=reads if not os.environ.get('FNORD') else (lambda b: []), mfma=mf))
    pipeline2(a, steps, la=1, npre=2, rpg=2, ipos=eval(os.environ.get("IPOS", "[1, 5, 9, 12]")))
    stamp(a, 11); stc(a, 'F', 1)
    if os.environ.get('FREP'):
        a('s_barrier'); stc(a, 'R', 0)
        vm = VM()
        for c in range(NS): issue(c)
        if os.environ.get('FREP') == '2': pipeline2(a, steps, la=1, npre=2, rpg=2, ipos=eval(os.environ.get("IPOS", "[1, 5, 9, 12]")))
        else:
            for c in range(16):
                a('s_waitcnt vmcnt(%d)\ns_barrier' % vm.wait(lambda t: t <= c))
                if c >= 1: issue(c-1+NS)
        stc(a, 'R', 1)
    a('s_barrier\ns_mul_i32 s5, s4, %d\ns_bfe_u32 s6, s3, 0x10001\ns_mul_i32 s6, s6, %d\ns_add_u32 s5, s5, s6\nv_add_u32 v5, s5, v2' % (28*1024, 14*1024))
    for j in range(14): a('ds_write_b128 v5, v[%d:%d] offset:%d' % (ACC+4*j, ACC+4*j+3, j*1024))
    a('ds_read_b128 v[112:115], v125\nds_read_b128 v[116:119], v125 offset:16')
    a('s_waitcnt lgkmcnt(0)\ns_barrier')
    a('s_and_b32 s5, s3, 3\ns_mul_i32 s5, s5, %d\ns_lshr_b32 s6, s3, 2\ns_lshl_b32 s6, s6, 12\ns_add_u32 s5, s5, s6\nv_add_u32 v5, s5, v2\nv_add_u32 v6, %d, v5' % (7*1024, 2*28*1024))
    for kq in range(4):
        for j in range(4):
            d = 128+(kq*4+j)*4
            a('ds_read_b128 v[%d:%d], v%d offset:%d' % (d, d+3, 5+(kq >> 1), (kq & 1)*28*1024+j*1024))
    pair_col_addr(a, 16)
    a('v_mul_u32_u24 v5, 1792, v120\nv_add_u32 v16, v16, v5\ns_mul_i32 s14, s9, 224\ns_waitcnt lgkmcnt(0)\ns_barrier')
    a('v_lshlrev_b32 v121, 16, v121')
    for r in range(16):
        a('v_add_f32 v%d, v%d, v%d\nv_add_f32 v%d, v%d, v%d\nv_add_f32 v%d, v%d, v%d' % (128+r, 128+r, 144+r, 160+r, 160+r, 176+r, 128+r, 128+r, 160+r))
    for r in range(16):
        rnd_bf16(a, 128+r); a('v_add_f32 v%d, v%d, v121' % (128+r, 128+r)); rnd_bf16(a, 128+r)
    for q in range(8):
        unpack(a, 6, 7, 112+q)
        a('v_mul_f32 v6, v6, v%d\nv_mul_f32 v7, v7, v%d\nv_cvt_pk_bf16_f32 v%d, v6, v7' % (128+2*q, 129+2*q, 112+q))
    store_pairs(a, 112, 16, 60, 's14', SC)
    publish(a, CF, 8, 22)

def phaseG(a):
    srd(a, 44, 'ws', WS_X1, 2*MB); srd(a, 48, 'ws', WS_U, 2048*1792); srd(a, 52, 'ws', WS_MOD, 6*2048); srd(a, 60, 'out', 0, 2*MB)
    NS = 3
    vm = VM()
    rowA_dma_addr(a, 28, 1792)
    a('s_mul_i32 s10, s8, %d\ns_lshl_b32 s12, s3, 11' % (64*1792))
    resid_epilogue(a, 32, 44, 60, 52, 5*2048, 64, False)
    srd(a, 56, 'wout', 0, 896*1024)
    wpanel_dma_addr(a, 24, 1024, 'nat')
    a('s_lshl_b32 s11, s3, 10')
    def issueW():
        for c in range(14):
            a('s_mov_b32 s5, %d\ns_add_u32 s6, s11, %d' % (c*64*1024, 49152+c*8192)); dma(a, 24, 56, 's5', 's6')
    l1 = a.uniq('gw'); l2 = a.uniq('gw')
    a('s_cmp_eq_u32 s3, 0\ns_cbranch_scc1 %s' % l1); issueW(); a('s_branch %s' % l2)
    a.label(l1); poll(a, CF, 8, 8); issueW(); a.label(l2)
    a('s_barrier')
    stamp(a, 12); stc(a, 'G', 0)
    def issueL(c):
        L = []
        if c > 6: return L
        for j in range(2):
            L.append('s_add_u32 s5, s10, %d\ns_add_u32 s6, s12, %d\n' % (c*256, (c % NS)*16384+j*1024) + dmas(28+j, 48, 's5', 's6', LSC)); vm.issue(c)
        return L
    def issue(c):
        for x in issueL(c): a(x)
    for c in range(NS): issue(c)
    wpanel_rd_addr(a, 25, 'nat', 49152)
    a('v_add_u32 v30, 0xe000, v25\nv_add_u32 v31, 0xe000, v26')
    a('v_and_b32 v5, 15, v1\nv_lshrrev_b32 v6, 4, v1\nv_xor_b32 v6, v5, v6\nv_lshlrev_b32 v6, 4, v6\nv_lshl_add_u32 v6, v5, 8, v6\ns_and_b32 s5, s3, 3\ns_lshl_b32 s5, s5, 12\nv_add_u32 v6, s5, v6')
    for ks in range(4): a('v_xor_b32 v%d, %d, v6' % (88+ks, ks << 6))
    ACC = 32
    for r in range(8): a('v_mov_b32 v%d, 0' % (ACC+r))
    BUF = [40, 64, 96]
    steps = []
    for s in range(14):
        c = s >> 1
        def reads(b, s=s, c=c):
            L = []
            for k in range(2):
                st = 2*s+k
                L.append('ds_read_b128 v[%d:%d], v%d offset:%d' % (BUF[b]+4*k, BUF[b]+4*k+3, 88+(st & 3), (c % NS)*16384))
                for t in range(2):
                    for h in range(2):
                        d = BUF[b]+8+k*8+t*4+2*h
                        L.append('ds_read_b64_tr_b16 v[%d:%d], v%d offset:%d' % (d, d+1, (25 if st < 14 else 30)+t, (st % 14)*4096+h*512))
            return L
        def mf(b): return [m16(ACC+4*t, BUF[b]+8+k*8+t*4, BUF[b]+4*k) for k in range(2) for t in range(2)]
        def iss(c=c): return issueL(c-1+NS) if c >= 1 else []
        steps.append(dict(sync=((lambda c=c: vm.wait(lambda t: t <= c)), iss) if s % 2 == 0 else None, reads=reads, mfma=mf))
    pipeline2(a, steps, la=1)
    stamp(a, 13); stc(a, 'G', 1)
    resid_finish(a, ACC, 60, 64, False)

def kmain(a):
    prologue(a, 256)
    wgmap(a, 8, 9)
    a('s_and_b32 s4, s2, 7\ns_lshl_b32 s4, s4, 2\ns_bfe_u32 s5, s2, 0x20003\ns_add_u32 s88, s4, s5\ns_lshr_b32 s89, s2, 5')
    srd(a, SRD_FLAG, 'ws', WS_FLAG, 0x8000)
    attn(a); phaseD(a); phaseE(a); phaseF(a); phaseG(a)
    stamp(a, 14); stamp_rt(a, 15)
    a('s_endpgm')
```

```python
import sys
sys.path.insert(0, 'gen')
import gen
if len(sys.argv) > 2 and sys.argv[2] == 'instr': gen.INSTR = True
from gen import *
from gen4 import kmain as km
def kmain(a):
    gen.SC = ' sc1'; km(a); gen.SC = ''
ks = [('k0_kernel', k0, 4096, 64), ('k1_kernel', k1, 163840, 256), ('km_kernel', kmain, 163840, 256)]
build(ks, sys.argv[1] if len(sys.argv) > 1 else 'cdna_kernels/%s.s' % NAME)
```

```python
import sys, struct
sys.path.insert(0, 'gen')
from asmlib import *
NAME = 'adaLN_cond__mha_block__mixer_gmlp__prompt'
MB = 1 << 20
WS_MOD = 0; WS_KMAX = 0x4000; WS_FLAG = 0x10000
WS_ST1 = 1*MB; WS_ST2 = WS_ST1 + 0x40000; WS_ST3 = WS_ST2 + 0x40000
WS_WIN = 2*MB; WS_Q = 4*MB; WS_K = 6*MB; WS_V = 8*MB; WS_O = 10*MB; WS_X1 = 12*MB
WS_Z2N = 14*MB; WS_Z1 = 18*MB; WS_U = 22*MB
P = dict(x=16, wqkv=18, wo=20, win=24, wsp=26, bsp=28, wout=30, c=32, wmod=34, out=36, dbg=38, ws=40)
SC = ''
def fbits(x): return '0x%08x' % struct.unpack('<I', struct.pack('<f', x))[0]
def prologue(a, nwg):
    a('s_load_dwordx16 s[16:31], s[0:1], 0\ns_load_dwordx8 s[32:39], s[0:1], 64\ns_load_dwordx2 s[40:41], s[0:1], 96')
    a('s_cmp_ge_u32 s2, %d' % nwg)
    e = a.uniq('go'); a('s_cbranch_scc0 %s\ns_endpgm' % e); a.label(e)
    a('v_and_b32 v1, 63, v0\nv_lshrrev_b32 v2, 6, v0\ns_nop 0\nv_readfirstlane_b32 s3, v2')
    a('s_waitcnt lgkmcnt(0)')
    stamp_init(a); stamp_rt(a, 0); stamp(a, 1)
INSTR = False
WS_TS = 28*MB
KID = [0]
def stamp_init(a):
    if not INSTR: return
    a('s_lshl_b32 s92, s2, 8\ns_add_u32 s92, s92, 0x%x\ns_add_u32 s96, s40, s92\ns_addc_u32 s97, s41, 0\ns_mov_b32 s98, 256\ns_mov_b32 s99, 0x00020000\ns_lshl_b32 s94, s3, 2' % (WS_TS + KID[0]*256*256))
def _st(a, i, ins):
    if not INSTR: return
    l = a.uniq('st')
    a('s_cmp_eq_u32 s3, 0\ns_cbranch_scc0 %s\n%s s[92:93]\ns_waitcnt lgkmcnt(0)\nv_mov_b32 v3, s92\nbuffer_store_dword v3, off, s[96:99], 0 offset:%d' % (l, ins, 4*i))
    a.label(l)
def stamp(a, i): _st(a, i, 's_memrealtime')
def stamp_rt(a, i): _st(a, i, 's_memrealtime')
def stampw(a, i):
    if not INSTR: return
    a('s_memrealtime s[92:93]\ns_waitcnt lgkmcnt(0)\nv_mov_b32 v3, s92\nbuffer_store_dword v3, off, s[96:99], s94 offset:%d' % (4*i))
def stampc(a, i):
    if not INSTR: return
    a('s_memtime s[92:93]\ns_waitcnt lgkmcnt(0)\nv_mov_b32 v3, s92\nbuffer_store_dword v3, off, s[96:99], s94 offset:%d' % (4*i))
def stamp_out(a, kid, n=8): pass
def srd(a, d, ptr, off, size):
    if off: a('s_add_u32 s%d, s%d, 0x%x\ns_addc_u32 s%d, s%d, 0' % (d, P[ptr], off, d+1, P[ptr]+1))
    else: a('s_mov_b32 s%d, s%d\ns_mov_b32 s%d, s%d' % (d, P[ptr], d+1, P[ptr]+1))
    a('s_mov_b32 s%d, 0x%x\ns_mov_b32 s%d, 0x00020000' % (d+2, size, d+3))
def unpack(a, dlo, dhi, src):
    a('v_lshlrev_b32 v%d, 16, v%d\nv_and_b32 v%d, 0xffff0000, v%d' % (dlo, src, dhi, src))
def red_xor16(a, r, t):
    a('v_mov_b32 v%d, v%d\nv_permlane16_swap_b32 v%d, v%d\nv_add_f32 v%d, v%d, v%d' % (t, r, r, t, r, r, t))
def red_xor32(a, r, t):
    a('v_mov_b32 v%d, v%d\nv_permlane32_swap_b32 v%d, v%d\nv_add_f32 v%d, v%d, v%d' % (t, r, r, t, r, r, t))
def dpp_add(a, r, mode, op='v_add_f32'):
    a('%s_dpp v%d, v%d, v%d %s row_mask:0xf bank_mask:0xf' % (op, r, r, r, mode))
QP1 = 'quad_perm:[1,0,3,2]'; QP2 = 'quad_perm:[2,3,0,1]'
def rnd_bf16(a, r, t=None):
    a('v_cvt_pk_bf16_f32 v%d, v%d, v%d\nv_lshlrev_b32 v%d, 16, v%d' % (r, r, r, r, r))

def k0(a):
    prologue(a, 256)
    a('s_cmp_lt_u32 s2, 64\ns_cbranch_scc0 k0_b')
    a('s_cmp_lt_u32 s2, 48\ns_cbranch_scc1 k0_mod')
    srd(a, 44, 'ws', WS_FLAG, 0x8000)
    a('s_sub_u32 s4, s2, 48\ns_lshl_b32 s4, s4, 11\nv_lshlrev_b32 v2, 2, v0\nv_mov_b32 v3, 0\nbuffer_store_dword v3, v2, s[44:47], s4 offen\ns_endpgm')
    a.label('k0_mod')
    srd(a, 44, 'wmod', 0, 512*6144); srd(a, 48, 'c', 0, 1024); srd(a, 52, 'ws', WS_MOD, 6*2048)
    a('v_lshrrev_b32 v2, 3, v0\nv_and_b32 v3, 7, v0\nv_mul_u32_u24 v4, 6144, v2\nv_lshl_add_u32 v4, v3, 4, v4\nv_lshlrev_b32 v5, 1, v2\ns_lshl_b32 s4, s2, 7')
    for i in range(8):
        a('s_add_u32 s5, s4, %d\nbuffer_load_dwordx4 v[%d:%d], v4, s[44:47], s5 offen' % (i*64*6144, 16+4*i, 19+4*i))
    for i in range(8):
        a('buffer_load_ushort v%d, v5, s[48:51], 0 offen offset:%d' % (8+i, i*128))
    a('s_waitcnt vmcnt(0)')
    for i in range(8):
        r = 8+i
        a('v_lshlrev_b32 v%d, 16, v%d\nv_mul_f32 v6, %s, v%d\nv_exp_f32 v6, v6\nv_add_f32 v6, 1.0, v6\nv_rcp_f32 v6, v6\nv_mul_f32 v%d, v%d, v6' % (r, r, fbits(-1.4426950408889634), r, r, r))
        rnd_bf16(a, r)
    for e in range(8): a('v_mov_b32 v%d, 0' % (48+e))
    for i in range(8):
        for q in range(4):
            unpack(a, 6, 7, 16+4*i+q)
            a('v_fmac_f32 v%d, v6, v%d\nv_fmac_f32 v%d, v7, v%d' % (48+2*q, 8+i, 49+2*q, 8+i))
    for e in range(8):
        dpp_add(a, 48+e, 'row_ror:8')
    for e in range(8): red_xor16(a, 48+e, 6)
    for e in range(8): red_xor32(a, 48+e, 6)
    a('v_lshlrev_b32 v6, 5, v3\ns_lshl_b32 s5, s3, 8\nv_add_u32 v6, s5, v6\nv_cmp_gt_u32 vcc, 8, v1\ns_and_saveexec_b64 s[6:7], vcc')
    a('ds_write_b128 v6, v[48:51]\nds_write_b128 v6, v[52:55] offset:16\ns_mov_b64 exec, s[6:7]\ns_waitcnt lgkmcnt(0)\ns_barrier')
    a('s_cmp_eq_u32 s3, 0\ns_cbranch_scc1 k0_mod2\ns_endpgm')
    a.label('k0_mod2')
    a('v_lshlrev_b32 v6, 2, v1')
    for i in range(8): a('ds_read_b32 v%d, v6 offset:%d' % (8+i, i*256))
    a('s_waitcnt lgkmcnt(0)')
    for i in range(1, 8): a('v_add_f32 v8, v8, v%d' % (8+i))
    rnd_bf16(a, 8)
    a('s_lshr_b32 s5, s2, 3\ns_cmp_eq_u32 s5, 1\ns_cbranch_scc1 k0_p1\ns_cmp_eq_u32 s5, 4\ns_cbranch_scc0 k0_st')
    a.label('k0_p1'); a('v_add_f32 v8, 1.0, v8'); rnd_bf16(a, 8)
    a.label('k0_st')
    a('s_lshl_b32 s5, s2, 8\nbuffer_store_dword v8, v6, s[52:55], s5 offen')
    a('s_waitcnt vmcnt(0)' if INSTR else ''); stamp(a, 13); a('s_endpgm')
    a.label('k0_b')
    a('s_cmp_lt_u32 s2, 128\ns_cbranch_scc0 k0_c')
    srd(a, 44, 'x', 0, 2*MB); srd(a, 48, 'ws', WS_ST1, 0x40000)
    a('s_sub_u32 s4, s2, 64\ns_lshl_b32 s4, s4, 5\ns_lshl_b32 s5, s3, 2\ns_add_u32 s4, s4, s5\ns_lshl_b32 s5, s4, 10\nv_lshlrev_b32 v2, 4, v1')
    for i in range(4): a('buffer_load_dwordx4 v[%d:%d], v2, s[44:47], s5 offen offset:%d' % (8+4*i, 11+4*i, i*1024))
    a('v_lshrrev_b32 v3, 2, v1\nv_lshlrev_b32 v3, 3, v3\nv_and_b32 v4, 3, v1\ns_lshl_b32 s4, s4, 7')
    for i in range(4):
        a('s_waitcnt vmcnt(%d)' % (3-i))
        S, Q = 32+2*i, 33+2*i
        a('v_mov_b32 v%d, 0\nv_mov_b32 v%d, 0' % (S, Q))
        for q in range(4):
            unpack(a, 6, 7, 8+4*i+q)
            a('v_add_f32 v%d, v%d, v6\nv_fmac_f32 v%d, v6, v6\nv_add_f32 v%d, v%d, v7\nv_fmac_f32 v%d, v7, v7' % (S, S, Q, S, S, Q))
    for m in (QP1, QP2):
        for r in range(32, 40): dpp_add(a, r, m)
    a('v_cmp_eq_u32 vcc, 0, v4\ns_and_saveexec_b64 s[6:7], vcc')
    for i in range(4): a('buffer_store_dwordx2 v[%d:%d], v3, s[48:51], s4 offen offset:%d' % (32+2*i, 33+2*i, i*128))
    a('s_waitcnt vmcnt(0)' if INSTR else ''); stamp(a, 14); a('s_endpgm')
    a.label('k0_c')
    srd(a, 44, 'win', 0, 512*3584); srd(a, 48, 'ws', WS_WIN, 512*3584)
    a('s_sub_u32 s4, s2, 128\ns_lshl_b32 s4, s4, 9\nv_add_u32 v2, s4, v0\ns_mov_b32 s5, 0x24924925')
    for ps in range(2):
        n = 2
        if ps: a('v_add_u32 v2, 0x10000, v2')
        b = 10+10*ps
        a('v_lshrrev_b32 v3, 1, v%d\nv_mul_hi_u32 v3, v3, s5' % n)
        a('v_mul_u32_u24 v4, 14, v3\nv_sub_u32 v4, v%d, v4' % n)
        a('v_and_b32 v5, 511, v3')
        a('v_lshrrev_b32 v6, 1, v5\nv_and_b32 v6, 4, v6\nv_lshlrev_b32 v7, 1, v5\nv_and_b32 v7, 8, v7\nv_and_b32 v5, 0x1f3, v5\nv_or3_b32 v5, v5, v6, v7')
        a('v_bfe_u32 v6, v3, 9, 1\nv_xor_b32 v6, 1, v6\nv_mul_u32_u24 v6, 1792, v6')
        a('v_lshrrev_b32 v7, 10, v3\nv_mul_u32_u24 v7, 224, v7')
        a('v_mul_u32_u24 v5, 3584, v5\nv_add3_u32 v5, v5, v6, v7\nv_lshl_add_u32 v5, v4, 4, v5')
        a('v_cmp_gt_u32 vcc, 114688, v%d\nv_mov_b32 v6, 0x7fffffff\ns_nop 0\nv_cndmask_b32 v5, v6, v5, vcc' % n)
        a('buffer_load_dwordx4 v[%d:%d], v5, s[44:47], 0 offen\nv_lshlrev_b32 v%d, 4, v%d' % (b, b+3, b+4, n))
    a('s_waitcnt vmcnt(1)\nbuffer_store_dwordx4 v[10:13], v14, s[48:51], 0 offen\ns_waitcnt vmcnt(1)\nbuffer_store_dwordx4 v[20:23], v24, s[48:51], 0 offen')
    a('s_waitcnt vmcnt(0)' if INSTR else ''); stamp(a, 15); a('s_endpgm')

def ln_prologue_loads(a, sx, sst, smod, srow0, modA, modS, XR=16, ld=''):
    a('s_lshl_b32 s5, s3, 3\ns_add_u32 s5, s5, s%d\ns_lshl_b32 s6, s5, 10\ns_lshl_b32 s7, s5, 7\nv_lshlrev_b32 v2, 4, v1' % srow0)
    a('buffer_load_dwordx4 v[8:11], v2, s[%d:%d], s7 offen%s' % (sst, sst+3, ld))
    a('s_add_u32 s7, s6, 4096')
    for i in range(8):
        a('buffer_load_dwordx4 v[%d:%d], v2, s[%d:%d], s%d offen offset:%d%s' % (XR+4*i, XR+4*i+3, sx, sx+3, 6 if i < 4 else 7, (i & 3)*1024, ld))
    a('v_lshlrev_b32 v3, 5, v1')
    for (d, off) in ((48, modA), (56, modS)):
        a('s_mov_b32 s5, %d' % off)
        for h in range(2):
            a('buffer_load_dwordx4 v[%d:%d], v3, s[%d:%d], s5 offen offset:%d%s' % (d+4*h, d+4*h+3, smod, smod+3, 16*h, ld))
def ln_prologue_compute(a, abase, nafter, XR=16):
    a('s_waitcnt vmcnt(%d)' % (12+nafter))
    a('v_add_f32 v8, v8, v10\nv_add_f32 v9, v9, v11')
    for m in (QP1, QP2, 'row_half_mirror'):
        dpp_add(a, 8, m); dpp_add(a, 9, m)
    a('v_mul_f32 v8, %s, v8\nv_mul_f32 v9, %s, v9\nv_fma_f32 v9, -v8, v8, v9\nv_max_f32 v9, 0, v9\nv_add_f32 v9, %s, v9\nv_rsq_f32 v9, v9\ns_nop 0\nv_mul_f32 v8, v8, v9\nv_sub_f32 v8, 0, v8' % (fbits(1/512), fbits(1/512), fbits(1e-5)))
    for i in range(8):
        a('v_readlane_b32 s%d, v9, %d\nv_readlane_b32 s%d, v8, %d' % (68+2*i, 8*i, 69+2*i, 8*i))
    ln_apply(a, abase, nafter, XR)
def ln_apply(a, abase, nafter, XR=16):
    a('v_lshrrev_b32 v4, 2, v1\nv_lshlrev_b32 v4, 10, v4\nv_and_b32 v5, 3, v1\nv_lshl_add_u32 v4, v5, 8, v4\nv_and_b32 v5, 15, v1\nv_lshl_add_u32 v4, v5, 4, v4')
    a('s_lshr_b32 s5, s3, 1\ns_lshl_b32 s5, s5, 14\ns_add_u32 s5, s5, %d\ns_and_b32 s6, s3, 1\ns_lshl_b32 s6, s6, 7\nv_xor_b32 v4, s6, v4\nv_add_u32 v4, s5, v4' % abase)
    a('s_waitcnt vmcnt(%d)' % nafter)
    for i in range(8):
        a('v_mov_b32 v5, s%d' % (69+2*i))
        for q in range(4):
            unpack(a, 6, 7, XR+4*i+q)
            a('v_fma_f32 v6, v6, s%d, v5\nv_fma_f32 v7, v7, s%d, v5' % (68+2*i, 68+2*i))
            a('v_fma_f32 v6, v6, v%d, v%d\nv_fma_f32 v7, v7, v%d, v%d' % (48+2*q, 56+2*q, 49+2*q, 57+2*q))
            a('v_cvt_pk_bf16_f32 v%d, v6, v7' % (XR+4*i+q))
        a('v_xor_b32 v12, %d, v4\nds_write_b128 v12, v[%d:%d]' % (i << 4, XR+4*i, XR+4*i+3))
def afrag_addrs(a, d, abase_sgpr):
    a('v_lshrrev_b32 v5, 4, v1\nv_and_b32 v6, 15, v1\nv_xor_b32 v6, v5, v6\nv_lshlrev_b32 v6, 4, v6\nv_lshl_add_u32 v6, v5, 8, v6')
    for s in range(4):
        a('v_xor_b32 v%d, %d, v6\nv_add_u32 v%d, s%d, v%d' % (d+s, s << 6, d+s, abase_sgpr, d+s))
def wgmap(a, d_hi, d_lo):
    a('s_and_b32 s4, s2, 1\ns_lshl_b32 s4, s4, 2\ns_bfe_u32 s5, s2, 0x20003\ns_add_u32 s%d, s4, s5' % d_lo)
    a('s_bfe_u32 s4, s2, 0x20001\ns_lshl_b32 s4, s4, 3\ns_lshr_b32 s5, s2, 5\ns_add_u32 s%d, s4, s5' % d_hi)
def dma(a, voff, srd_, soff, ldsaddr_s, ld=''):
    a('s_mov_b32 m0, %s\nbuffer_load_dwordx4 v%d, s[%d:%d], %s offen%s lds' % (ldsaddr_s, voff, srd_, srd_+3, soff, ld))

def k1(a):
    prologue(a, 256)
    wgmap(a, 8, 9)
    srd(a, 44, 'x', 0, 2*MB); srd(a, 48, 'ws', WS_ST1, 0x40000); srd(a, 52, 'ws', WS_MOD, 6*2048); srd(a, 56, 'wqkv', 0, 512*3072)
    a('s_lshl_b32 s10, s8, 6')
    ln_prologue_loads(a, 44, 48, 52, 10, 1*2048, 0)
    RING = 65536; SLOT = 24576
    a('v_lshrrev_b32 v5, 3, v1\ns_lshl_b32 s5, s3, 3\nv_add_u32 v5, s5, v5\nv_mul_u32_u24 v64, 3072, v5')
    a('v_bfe_u32 v5, v1, 4, 1\ns_and_b32 s5, s3, 1\ns_lshl_b32 s5, s5, 1\nv_or_b32 v5, s5, v5\nv_lshlrev_b32 v5, 1, v5\nv_and_b32 v6, 7, v1\nv_xor_b32 v5, v5, v6\nv_lshl_add_u32 v64, v5, 4, v64')
    a('s_lshl_b32 s5, s9, 7\nv_add_u32 v64, s5, v64\ns_lshl_b32 s11, s3, 10\ns_add_u32 s11, s11, %d' % RING)
    def issue(c):
        for p in range(3):
            a('s_mov_b32 s5, %d\ns_add_u32 s6, s11, %d' % (c*64*3072 + p*1024, (c % 4)*SLOT + p*8192))
            dma(a, 64, 56, 's5', 's6')
    for c in range(3): issue(c)
    stamp(a, 2)
    ln_prologue_compute(a, 0, 9)
    stamp(a, 3)
    a('s_and_b32 s5, s3, 1\ns_lshl_b32 s5, s5, 15')
    afrag_addrs(a, 65, 5)
    a('v_lshrrev_b32 v5, 4, v1\nv_bfe_u32 v6, v1, 2, 2\nv_lshl_add_u32 v7, v5, 3, v6\nv_lshlrev_b32 v7, 7, v7')
    a('v_bfe_u32 v6, v1, 3, 1\nv_and_b32 v5, 1, v5\nv_lshl_or_b32 v5, v5, 1, v6\ns_lshr_b32 s5, s3, 1\nv_xor_b32 v5, s5, v5\nv_lshl_add_u32 v7, v5, 5, v7')
    a('v_and_b32 v5, 3, v1\nv_lshl_add_u32 v7, v5, 3, v7\nv_add_u32 v69, %d, v7\nv_add_u32 v70, %d, v7' % (RING, RING+2*SLOT))
    ACC = 72
    for r in range(24): a('v_mov_b32 v%d, 0' % (ACC+r))
    AF = 96; BF = 112
    for c in range(8):
        a('s_waitcnt vmcnt(%d) lgkmcnt(0)\ns_barrier' % (6 if c < 6 else (7-c)*3))
        if c+3 < 8: issue(c+3)
        for ks in range(2):
            st = 2*c+ks
            for rt in range(2):
                a('ds_read_b128 v[%d:%d], v%d offset:%d' % (AF+ks*8+rt*4, AF+ks*8+rt*4+3, 65+(st & 3), (st >> 2)*4096+(st & 3)*1024+rt*16384))
            for p in range(3):
                for h in range(2):
                    d = BF+ks*12+p*4+2*h
                    a('ds_read_b64_tr_b16 v[%d:%d], v%d offset:%d' % (d, d+1, 69+((c % 4) >> 1), (c & 1)*SLOT+p*8192+ks*4096+h*512))
        for ks in range(2):
            a('s_waitcnt lgkmcnt(%d)' % (8 if ks == 0 else 0))
            for p in range(3):
                for rt in range(2):
                    A = vr(AF+ks*8+rt*4, 4); B = vr(BF+ks*12+p*4, 4); D = vr(ACC+p*8+rt*4, 4)
                    if p < 2: a('v_mfma_f32_16x16x32_bf16 %s, %s, %s, %s' % (D, B, A, D))
                    else: a('v_mfma_f32_16x16x32_bf16 %s, %s, %s, %s' % (D, A, B, D))
    stamp(a, 4)
    srd(a, 60, 'ws', WS_Q, 6*MB); srd(a, 64, 'ws', WS_KMAX, 32*64*4)
    a('s_lshl_b32 s5, s9, 2\ns_lshr_b32 s6, s3, 1\ns_add_u32 s5, s5, s6\ns_lshl_b32 s5, s5, 6\ns_lshl_b32 s6, s8, 1\ns_add_u32 s5, s5, s6\ns_and_b32 s6, s3, 1\ns_add_u32 s5, s5, s6')
    a('s_lshl_b32 s6, s5, 10\ns_lshl_b32 s7, s5, 2\nv_lshlrev_b32 v2, 4, v1')
    for r in range(8): a('v_mul_f32 v%d, %s, v%d' % (ACC+r, fbits(0.25*1.4426950408889634), ACC+r))
    for rt in range(2):
        k = ACC+8+rt*4
        a('v_mul_f32 v%d, v%d, v%d' % (8+rt, k, k))
        for e in range(1, 4): a('v_fmac_f32 v%d, v%d, v%d' % (8+rt, k+e, k+e))
    for rt in range(2): red_xor16(a, 8+rt, 6)
    for rt in range(2): red_xor32(a, 8+rt, 6)
    a('v_max_f32 v8, v8, v9')
    for m in (QP1, QP2, 'row_half_mirror', 'row_mirror'): dpp_add(a, 8, m, 'v_max_f32')
    for p in range(3):
        b = ACC+p*8; d = 16+4*p
        a('v_cvt_pk_bf16_f32 v%d, v%d, v%d\nv_cvt_pk_bf16_f32 v%d, v%d, v%d\nv_cvt_pk_bf16_f32 v%d, v%d, v%d\nv_cvt_pk_bf16_f32 v%d, v%d, v%d' % (d, b, b+1, d+1, b+2, b+3, d+2, b+4, b+5, d+3, b+6, b+7))
        sw = 'v_permlane16_swap_b32' if p < 2 else 'v_permlane32_swap_b32'
        a('%s v%d, v%d\n%s v%d, v%d' % (sw, d, d+2, sw, d+1, d+3))
        a('s_add_u32 s4, s6, %d\nbuffer_store_dwordx4 v[%d:%d], v2, s[60:63], s4 offen%s' % (p*2*MB, d, d+3, SC))
    a('v_cmp_eq_u32 vcc, 0, v1\ns_and_saveexec_b64 s[12:13], vcc\nv_mov_b32 v9, 0\nbuffer_store_dword v8, v9, s[64:67], s7 offen%s' % SC)
    a('s_mov_b64 exec, -1'); stamp(a, 14); stamp_rt(a, 15); a('s_endpgm')

KERNELS = []
def build(kernels, path):
    hdr = open('cdna_kernels/%s.s.ref' % NAME).read().split('\n')
    head = [l for l in hdr if l.startswith(';') and '@launch' not in l and 'Override' not in l and 'grid=ceil' not in l]
    head = head[:head.index([l for l in head if 'd_ws' in l][0])+1]
    out = list(head)
    for (lab, fn, lds, vg) in kernels:
        out.append(('; @launch kernel=%s grid=(256,1,1) block=(512,1,1) lds=%d' % (lab, lds)) if len(kernels) > 1 else '; @launch grid=(256,1,1) block=(512,1,1) lds=%d' % lds)
    out += ['.amdgcn_target "amdgcn-amd-amdhsa--gfx950"', '.text']
    tot = 0
    for (lab, fn, lds, vg) in kernels:
        a = Asm(); a.uid = 1000*len(out); KID[0] = kernels.index((lab, fn, lds, vg))
        fn(a)
        body, nn = fix_hazards(a.l); tot += nn
        out += ['.globl %s' % lab, '.p2align 8', '.type %s,@function' % lab, lab + ':'] + body
    out += ['.section .rodata,"a"']
    for (lab, fn, lds, vg) in kernels:
        out += ['.p2align 6', '.amdhsa_kernel %s' % lab, '  .amdhsa_next_free_vgpr %d' % vg, '  .amdhsa_next_free_sgpr 102',
                '  .amdhsa_accum_offset %d' % vg, '  .amdhsa_group_segment_fixed_size 0', '  .amdhsa_kernarg_size 104',
                '  .amdhsa_user_sgpr_count 2', '  .amdhsa_user_sgpr_kernarg_segment_ptr 1', '  .amdhsa_system_sgpr_workgroup_id_x 1', '.end_amdhsa_kernel']
    open(path, 'w').write('\n'.join(out) + '\n')
    print('written', path, 'lines', len(out), 'nops', tot)
```

```python
from gen import *
from gen2 import *
from gen3 import VM, gelu, gelu_consts, pair_col_addr, store_pairs
import gen
SC = ' sc1'
import os
NOWSP = os.environ.get('NOWSP')
WF = 64
LSC = os.environ.get('LSC', ' sc1')
CA, CD, CE, CZ, CF = 0, 8, 40, 72, 80
SRD_FLAG = 84
def stc(a, k, e):
    if os.environ.get('STC', 'A') == k: stampw(a, 32 if e else 40); stampc(a, 56 if e else 48)
FSC = os.environ.get('FSC', ' sc1'); PSC = os.environ.get('PSC', ' sc0 sc1'); PSL = os.environ.get('PSL', '')
def flagst(a, base, sidx, rank):
    a('s_add_u32 s5, s%d, %d\ns_lshl_b32 s5, s5, 8\ns_lshl_b32 s6, s%d, 2\ns_add_u32 s5, s5, s6\nv_mov_b32 v5, 1\ns_mov_b64 exec, 1\nbuffer_store_dword v5, off, s[84:87], s5%s\ns_mov_b64 exec, -1' % (sidx, base, rank, FSC))
def publish(a, base, sidx, st, rank):
    l = a.uniq('pub')
    if st: stamp(a, st)
    a('s_waitcnt vmcnt(0)')
    if st: stamp(a, st+1)
    a('s_barrier\ns_cmp_eq_u32 s3, 0\ns_cbranch_scc0 %s' % l)
    flagst(a, base, sidx, rank)
    a.label(l)
def poll(a, base, sidx, n):
    l = a.uniq('poll'); d = a.uniq('pd')
    a('s_cmp_eq_u32 s3, 0\ns_cbranch_scc0 %s' % d)
    a('s_add_u32 s5, s%d, %d\ns_lshl_b32 s5, s5, 8\nv_lshlrev_b32 v6, 2, v1\ns_mov_b32 s6, 0' % (sidx, base))
    if n < 64: a('s_mov_b32 exec_lo, 0x%x\ns_mov_b32 exec_hi, 0' % ((1 << n)-1))
    a.label(l)
    a('buffer_load_dword v5, v6, s[84:87], s5 offen%s\ns_waitcnt vmcnt(0)\nv_cmp_ne_u32 vcc, 0, v5\ns_add_u32 s6, s6, 1\ns_cmp_gt_u32 s6, 0x20000\ns_cbranch_scc1 %s_x\ns_cmp_eq_u64 vcc, exec' % (PSC, l))
    if PSL: a('s_cbranch_scc1 %s_x\ns_sleep %s\ns_branch %s' % (l, PSL, l))
    else: a('s_cbranch_scc0 %s' % l)
    a.label(l+'_x'); a('s_mov_b64 exec, -1')
    a.label(d)
def pipeline(a, steps):
    def dosync(st):
        if st.get('sync'):
            n, fn = st['sync']
            a('s_waitcnt vmcnt(%d) lgkmcnt(0)\ns_barrier' % n())
            if fn: fn()
        else: a('s_waitcnt lgkmcnt(0)')
    dosync(steps[0]); steps[0]['reads'](0)
    for s in range(len(steps)):
        if s+1 < len(steps):
            dosync(steps[s+1]); steps[s+1]['reads']((s+1) & 1)
        else: a('s_waitcnt lgkmcnt(0)')
        steps[s]['mfma'](s & 1)
def pipeline2(a, steps, la=1, npre=1, rpg=3, ipos=None):
    nb = la+1; N = len(steps)
    def dosync(st):
        if st.get('sync'):
            n, fn = st['sync']
            a('s_waitcnt vmcnt(%d)\n%s' % (n(), 's_nop 0' if os.environ.get('NOBAR') else 's_barrier'))
            return fn() if fn else []
        return []
    nread = {}
    for s in range(min(la, N)):
        if s == 0: a('s_waitcnt lgkmcnt(0)')
        I = dosync(steps[s]); R = steps[s]['reads'](s % nb); nread[s] = len(R)
        for x in R+I: a(x)
    for s in range(N):
        pend = sum(nread[k] for k in range(s+1, min(s+la, N)))
        a('s_waitcnt lgkmcnt(%d)' % pend)
        M = steps[s]['mfma'](s % nb)
        for x in M[:npre]: a(x)
        rest = M[npre:]; R = []; I = []
        if s+la < N:
            I = dosync(steps[s+la]); R = steps[s+la]['reads']((s+la) % nb); nread[s+la] = len(R)
        ng = len(rest)
        per = {}
        rg = max(1, min(ng, -(-len(R)//rpg)))
        for k, x in enumerate(R): per.setdefault(min(k//rpg, ng), []).append(x)
        g0 = min(rg, ng)
        for k, x in enumerate(I): per.setdefault(min(ipos[k] if ipos else g0+k, ng), []).append(x)
        for i, m in enumerate(rest):
            for x in per.get(i, []): a(x)
            a(m)
        for x in per.get(ng, []): a(x)
        if steps[s].get('post'): steps[s]['post']()
def m16(D, A, B): return 'v_mfma_f32_16x16x32_bf16 %s, %s, %s, %s' % (vr(D, 4), vr(A, 4), vr(B, 4), vr(D, 4))
def dmas(voff, srd_, soff, ldsaddr_s, ld=''): return 's_mov_b32 m0, %s\nbuffer_load_dwordx4 v%d, s[%d:%d], %s offen%s lds' % (ldsaddr_s, voff, srd_, srd_+3, soff, ld)
def mf16(a, D, A, B): a('v_mfma_f32_16x16x32_bf16 %s, %s, %s, %s' % (vr(D, 4), vr(A, 4), vr(B, 4), vr(D, 4)))

def attn(a):
    srd(a, 44, 'ws', WS_Q, 6*MB); srd(a, 48, 'ws', WS_KMAX, 32*64*4); srd(a, 52, 'ws', WS_O, 2*MB); srd(a, 56, 'wsp', 0, 2048*4096)
    Q = 4; NEG = 16; S = [32, 48]; O = 64; KF = [80, 84]; VF = [[88, 92], [96, 100]]
    a('v_lshlrev_b32 v2, 4, v1\ns_lshl_b32 s10, s88, 16')
    a('s_lshl_b32 s5, s89, 3\ns_add_u32 s5, s5, s3\ns_lshl_b32 s5, s5, 10\ns_add_u32 s5, s5, s10')
    a('buffer_load_dwordx4 v[%d:%d], v2, s[44:47], s5 offen%s' % (Q, Q+3, LSC))
    a('v_lshlrev_b32 v3, 2, v1\ns_lshl_b32 s5, s88, 8\nbuffer_load_dword v8, v3, s[48:51], s5 offen'+LSC)
    a('s_lshl_b32 s11, s3, 10\ns_add_u32 s12, s10, s11\ns_add_u32 s12, s12, %d' % (2*MB))
    for j in range(8):
        a('s_add_u32 s5, s12, %d\ns_add_u32 s6, s11, %d' % (j*8192, j*8192)); dma(a, 2, 44, 's5', 's6', LSC)
        a('s_add_u32 s5, s12, %d\ns_add_u32 s6, s11, %d' % (j*8192 + 2*MB, j*8192 + 65536)); dma(a, 2, 44, 's5', 's6', LSC)
    for r in range(16): a('v_mov_b32 v%d, 0\nv_mov_b32 v%d, 0' % (NEG+r, O+r))
    a('v_and_b32 v9, 27, v1\nv_cmp_eq_u32 vcc, 16, v9\nv_mov_b32 v10, 0x3f803f80\nv_mov_b32 v11, 0\ns_nop 0\nv_cndmask_b32 v9, v11, v10, vcc')
    for r in range(88, 104): a('v_mov_b32 v%d, v9' % r)
    a('v_mov_b32 v12, v2\nv_and_b32 v13, 15, v1\nv_lshlrev_b32 v13, 4, v13\nv_lshrrev_b32 v14, 5, v1\nv_lshl_add_u32 v13, v14, 8, v13\nv_add_u32 v13, 0x10000, v13')
    a('s_mov_b32 s14, 0x0000ffff\ns_mov_b32 s15, 0x0000ffff')
    a('v_and_b32 v104, 15, v1\ns_lshl_b32 s5, s8, 6\ns_bfe_u32 s6, s3, 0x10001\ns_lshl_b32 s6, s6, 5\ns_add_u32 s5, s5, s6\nv_add_u32 v104, s5, v104\nv_lshlrev_b32 v104, 12, v104')
    a('v_lshrrev_b32 v105, 4, v1\nv_lshl_add_u32 v104, v105, 4, v104\ns_and_b32 s5, s3, 1\ns_lshr_b32 s6, s3, 2\ns_lshl_b32 s6, s6, 1\ns_or_b32 s5, s5, s6\ns_lshl_b32 s5, s5, 10\nv_add_u32 v104, s5, v104')
    srd(a, 60, 'wo', 0, 512*1024); srd(a, 64, 'wout', 0, 896*1024); srd(a, 68, 'ws', WS_WIN, 512*3584)
    a('v_lshrrev_b32 v105, 3, v1\ns_lshl_b32 s5, s3, 3\nv_add_u32 v105, s5, v105\nv_lshlrev_b32 v105, 10, v105\nv_and_b32 v106, 7, v1\nv_lshl_add_u32 v105, v106, 4, v105\ns_lshl_b32 s5, s9, 7\nv_add_u32 v105, s5, v105')
    a('s_and_b32 s91, s8, 7')
    a('s_waitcnt vmcnt(16)')
    red_max_wave(a, 8, 14)
    a('v_mov_b32 v10, 0')
    for q in range(4):
        unpack(a, 14, 15, Q+q); a('v_fmac_f32 v10, v14, v14\nv_fmac_f32 v10, v15, v15')
    red_xor32(a, 10, 14)
    a('v_mul_f32 v10, v10, v8\nv_mul_f32 v10, %s, v10\nv_mov_b32 v11, %s\nv_cmp_gt_f32 vcc, v10, v11' % (fbits(1.05), fbits(4096.0)))
    a('s_nop 1\ns_cmp_lg_u64 vcc, 0\ns_cselect_b32 s5, 1, 0\nv_mov_b32 v10, s5\ns_lshl_b32 s6, s3, 2\ns_add_u32 s6, s6, 0x22000\nv_mov_b32 v11, s6\nds_write_b32 v11, v10')
    a('s_waitcnt vmcnt(12) lgkmcnt(0)\ns_barrier')
    a('v_and_b32 v11, 7, v1\nv_lshlrev_b32 v11, 2, v11\nv_add_u32 v11, 0x22000, v11\nds_read_b32 v10, v11\ns_waitcnt lgkmcnt(0)\nv_cmp_ne_u32 vcc, 0, v10')
    a('s_cbranch_vccz k2_fast')
    a('s_waitcnt vmcnt(0)\ns_barrier\nv_mov_b32 v8, 0xff800000\nv_mov_b32 v14, v12\ns_mov_b32 s5, 0')
    a.label('k2_slow')
    a('ds_read_b128 v[80:83], v14\ns_waitcnt lgkmcnt(0)\nv_mfma_f32_32x32x16_bf16 v[32:47], v[80:83], v[4:7], v[16:31]')
    for r in range(0, 16, 2): a('v_max3_f32 v8, v8, v%d, v%d' % (32+r, 33+r))
    a('v_add_u32 v14, 1024, v14\ns_add_u32 s5, s5, 1\ns_cmp_lt_u32 s5, 64\ns_cbranch_scc1 k2_slow')
    a('v_mov_b32 v14, v8\nv_permlane32_swap_b32 v8, v14\nv_max_f32 v8, v8, v14\nv_sub_f32 v8, 0, v8')
    for r in range(16): a('v_mov_b32 v%d, v8' % (NEG+r))
    a.label('k2_fast')
    stamp(a, 2); stc(a, 'A', 0)
    def rdK(buf, off): a('ds_read_b128 v[%d:%d], v12 offset:%d' % (KF[buf], KF[buf]+3, off))
    def rdV(buf, off):
        a('s_mov_b64 exec, s[14:15]')
        for g in range(2): a('ds_read_b128 v[%d:%d], v13 offset:%d' % (VF[buf][g], VF[buf][g]+3, off+g*512))
        a('s_mov_b64 exec, -1')
    def mS(buf, kb): a('v_mfma_f32_32x32x16_bf16 v[%d:%d], v[%d:%d], v[%d:%d], v[%d:%d]' % (S[buf], S[buf]+15, KF[kb], KF[kb]+3, Q, Q+3, NEG, NEG+15))
    lds_ = []
    lds_.append(lambda: a('s_lshl_b32 s5, s91, 16\nbuffer_load_dwordx4 v[108:111], v105, s[60:63], s5 offen'))
    lds_.append(lambda: a('s_mul_i32 s5, s91, %d\nbuffer_load_dwordx4 v[108:111], v105, s[64:67], s5 offen' % (112*1024)))
    lds_.append(lambda: a('s_add_u32 s5, s5, 0xc000\nbuffer_load_dwordx4 v[108:111], v105, s[64:67], s5 offen'))
    for q in range(0):
        lds_.append(lambda q=q: a(('s_mul_i32 s5, s9, %d\ns_mul_i32 s6, s91, 28672\ns_add_u32 s5, s5, s6\ns_mul_i32 s6, s3, 3584\ns_add_u32 s73, s5, s6\n' % (2*512*224) if q == 0 else '') + 'buffer_load_dwordx4 v[108:111], v2, s[68:71], s73 offen offset:%d' % (q*1024)))
    for n in range(32):
        rt = n >> 4; j = (n >> 1) & 7; f = n & 1; d = 128+(rt*16+2*j+f)*4
        lds_.append(lambda rt=rt, j=j, f=f, d=d: a(('s_add_u32 s5, s91, %d\ns_and_b32 s5, s5, 7\ns_lshl_b32 s5, s5, 7\ns_add_u32 s5, s5, %d\n' % (j, rt*16*4096) if f == 0 else '') + 'buffer_load_dwordx4 v[%d:%d], v104, s[56:59], s5 offen offset:%d%s' % (d, d+3, f*WF, os.environ.get('WNT', ''))))
    sched = {}
    if not NOWSP:
        lds_ = lds_[3:] + lds_[:3]
        for k, fn in enumerate(lds_): sched.setdefault(8 + (k*54)//35, []).append(fn)
    def body(it):
        def ex(r0, r1):
            for r in range(r0, r1): a('v_exp_f32 v%d, v%d' % (r, r))
        def cv(d, n=4):
            for r in range(n): a('v_cvt_pk_bf16_f32 v%d, v%d, v%d' % (d+r, d+2*r, d+2*r+1))
        def pv(vf, p): a('v_mfma_f32_32x32x16_bf16 v[%d:%d], v[%d:%d], v[%d:%d], v[%d:%d]' % (O, O+15, vf, vf+3, p, p+3, O, O+15))
        for t in range(8):
            b = t & 1; s = S[b]; n_ = S[1-b]
            ex(s, s+2)
            pv(VF[1-b][1], n_+8)
            ex(s+2, s+7)
            a('s_waitcnt lgkmcnt(0)')
            mS(1-b, 1-b)
            rdK(b, (t+2)*1024); rdV(1-b, (t+1)*1024)
            for fn in sched.get(it*8+t, []): fn()
            ex(s+7, s+8); cv(s); ex(s+8, s+12)
            pv(VF[b][0], s)
            ex(s+12, s+16); cv(s+8)
        a('v_add_u32 v12, 8192, v12\nv_add_u32 v13, 8192, v13')
    rdK(0, 0); rdK(1, 1024); rdV(0, 0)
    for r in range(4): a('v_mov_b32 v%d, 0' % (S[1]+8+r))
    a('s_waitcnt lgkmcnt(0)'); mS(0, 0)
    body(0)
    a('s_waitcnt vmcnt(0)\ns_barrier')
    for it in range(1, 8): body(it)
    a('s_nop 1\nv_mfma_f32_32x32x16_bf16 v[%d:%d], v[%d:%d], v[%d:%d], v[%d:%d]' % (O, O+15, VF[1][1], VF[1][1]+3, S[1]+8, S[1]+11, O, O+15))
    stamp(a, 3); stc(a, 'A', 1)
    a('s_waitcnt lgkmcnt(0)\nv_rcp_f32 v8, v%d' % (O+8))
    for r in range(8): a('v_mul_f32 v%d, v%d, v8' % (O+r, O+r))
    for r in range(4): a('v_cvt_pk_bf16_f32 v%d, v%d, v%d' % (16+r, O+2*r, O+2*r+1))
    a('v_bfe_u32 v9, v1, 4, 1\nv_lshlrev_b32 v9, 14, v9\nv_lshrrev_b32 v10, 5, v1\nv_lshl_add_u32 v9, v10, 8, v9\nv_and_b32 v10, 15, v1\nv_lshl_add_u32 v9, v10, 4, v9')
    a('s_lshl_b32 s5, s89, 4\ns_lshl_b32 s6, s3, 1\ns_add_u32 s5, s5, s6\ns_lshl_b32 s5, s5, 14\ns_lshr_b32 s6, s88, 1\ns_lshl_b32 s6, s6, 10\ns_add_u32 s5, s5, s6\ns_and_b32 s6, s88, 1\ns_lshl_b32 s6, s6, 9\ns_add_u32 s5, s5, s6')
    a('buffer_store_dwordx4 v[16:19], v9, s[52:55], s5 offen sc1')
    publish(a, CA, 89, 16, 88)

def phaseD(a):
    srd(a, 44, 'x', 0, 2*MB); srd(a, 48, 'ws', WS_O, 2*MB); srd(a, 52, 'ws', WS_MOD, 6*2048); srd(a, 56, 'wo', 0, 512*1024)
    srd(a, 60, 'ws', WS_X1, 2*MB); srd(a, 64, 'ws', WS_ST2, 0x40000)
    wpanel_dma_addr(a, 24, 1024, 'm1')
    a('s_lshl_b32 s10, s8, 16\ns_lshl_b32 s11, s3, 10\ns_lshr_b32 s90, s8, 2')
    def issueW():
        for c in range(8):
            a('s_mov_b32 s5, %d\ns_add_u32 s6, s11, %d' % (c*64*1024, 65536+c*64*128)); dma(a, 24, 56, 's5', 's6')
    l1 = a.uniq('dw'); l2 = a.uniq('dw')
    a('s_cmp_eq_u32 s3, 0\ns_cbranch_scc1 %s' % l1); issueW(); a('s_branch %s' % l2)
    a.label(l1); stamp(a, 26); poll(a, CA, 90, 32); stamp(a, 24); issueW(); stamp(a, 25); a.label(l2)
    resid_epilogue(a, 32, 44, 60, 52, 2*2048, 64, True)
    a('s_barrier')
    stamp(a, 4)
    a('s_lshr_b32 s4, s3, 1\ns_lshl_b32 s4, s4, 14\ns_and_b32 s5, s3, 1\ns_lshl_b32 s5, s5, 11\ns_add_u32 s12, s4, s5')
    for c in range(4):
        for j in range(2):
            a('s_add_u32 s6, s12, %d\ns_add_u32 s5, s6, s10' % (c*4096+j*1024)); dma(a, 2, 48, 's5', 's6', LSC)
    wpanel_rd_addr(a, 25, 'm1', 65536)
    a('s_and_b32 s5, s3, 3\ns_lshl_b32 s5, s5, 14\nv_add_u32 v27, s5, v2')
    ACC = 32
    for r in range(8): a('v_mov_b32 v%d, 0' % (ACC+r))
    BUF = [40, 64, 96]
    steps = []
    for s in range(8):
        def reads(b, s=s):
            L = []
            for k in range(2):
                st = 2*s+k
                L.append('ds_read_b128 v[%d:%d], v27 offset:%d' % (BUF[b]+4*k, BUF[b]+4*k+3, st*1024))
                for t in range(2):
                    for h in range(2):
                        d = BUF[b]+8+k*8+t*4+2*h
                        L.append('ds_read_b64_tr_b16 v[%d:%d], v%d offset:%d' % (d, d+1, 25+t, st*4096+h*1024))
            return L
        def mf(b): return [m16(ACC+4*t, BUF[b]+8+k*8+t*4, BUF[b]+4*k) for k in range(2) for t in range(2)]
        steps.append(dict(sync=((lambda s=s: 2*(3-s//2)), None) if s % 2 == 0 else None, reads=reads, mfma=mf))
    pipeline2(a, steps, la=2)
    stamp(a, 5)
    resid_finish(a, ACC, 60, 64, True)
    publish(a, CD, 8, 18, 9)

def phaseE(a):
    srd(a, 44, 'ws', WS_X1, 2*MB); srd(a, 48, 'ws', WS_ST2, 0x40000); srd(a, 52, 'ws', WS_MOD, 6*2048); srd(a, 56, 'ws', WS_WIN, 512*3584)
    srd(a, 60, 'ws', WS_ST3, 0x40000)
    RING = 65536; NS = 6
    vm = VM()
    a('s_mul_i32 s14, s3, 1792\ns_mul_i32 s15, s9, %d\ns_add_u32 s15, s15, s14\ns_add_u32 s14, s14, %d\ns_lshl_b32 s10, s8, 6' % (2*512*224, RING))
    a('s_mov_b32 s12, -1\ns_mov_b32 s13, 0x0000ffff')
    def issueL(c, track=True):
        L = []
        if c > 15: return L
        for j in range(2):
            x = 's_add_u32 s5, s15, %d\ns_add_u32 m0, s14, %d\ns_nop 0\n' % (c*14336, (c % NS)*14336) if j == 0 else 's_mov_b64 exec, s[12:13]\n'
            x += 'buffer_load_dwordx4 v2, s[56:59], s5 offen offset:%d%s lds' % (j*1024, LSC)
            if j == 1: x += '\ns_mov_b64 exec, -1'
            L.append(x)
            if track: vm.issue(c)
        return L
    def issue(c, track=True):
        for x in issueL(c, track): a(x)
    l1 = a.uniq('ew'); l2 = a.uniq('ew')
    a('s_cmp_eq_u32 s3, 0\ns_cbranch_scc1 %s' % l1)
    for c in range(NS): issue(c, False)
    a('s_branch %s' % l2)
    a.label(l1); poll(a, CD, 8, 8)
    for c in range(NS): issue(c)
    a.label(l2)
    a('s_barrier')
    stamp(a, 6)
    ln_prologue_loads(a, 44, 48, 52, 10, 4*2048, 3*2048, ld=SC)
    for i in range(13): vm.issue(-1)
    ln_prologue_compute(a, 0, 0)
    stamp(a, 7); stc(a, 'E', 0)
    a('s_and_b32 s5, s3, 3\ns_lshl_b32 s5, s5, 14')
    afrag_addrs(a, 64, 5)
    a('v_lshrrev_b32 v5, 5, v1\nv_lshlrev_b32 v5, 4, v5\nv_bfe_u32 v6, v1, 4, 1\nv_lshl_add_u32 v5, v6, 2, v5\nv_bfe_u32 v6, v1, 2, 2\nv_add_u32 v5, v5, v6\nv_mul_u32_u24 v5, 224, v5')
    a('v_and_b32 v6, 3, v1\nv_lshl_add_u32 v5, v6, 3, v5\ns_lshr_b32 s5, s3, 2\ns_lshl_b32 s5, s5, 7\ns_add_u32 s5, s5, %d\nv_add_u32 v68, s5, v5\nv_add_u32 v69, %d, v68' % (RING, 3*14336))
    Z = [72, 88]
    for r in range(32): a('v_mov_b32 v%d, 0' % (72+r))
    gelu_consts(a, 70)
    BUF = [12, 32, 104]
    def mid():
        for r in range(16): gelu(a, 72+r, 8+(r & 1), 70)
        a('v_mov_b32 v8, 0\nv_mov_b32 v9, 0')
        for r in range(12): a('v_add_f32 v8, v8, v%d\nv_fmac_f32 v9, v%d, v%d' % (72+r, 72+r, 72+r))
        l = a.uniq('es'); a('s_cmp_ge_u32 s3, 4\ns_cbranch_scc1 %s' % l)
        for r in range(12, 16): a('v_add_f32 v8, v8, v%d\nv_fmac_f32 v9, v%d, v%d' % (72+r, 72+r, 72+r))
        a.label(l)
        for r in (8, 9): red_xor16(a, r, 6)
        for r in (8, 9): red_xor32(a, r, 6)
        a('v_and_b32 v71, 15, v1\ns_and_b32 s5, s3, 3\ns_lshl_b32 s5, s5, 4\ns_add_u32 s5, s5, s10\nv_add_u32 v71, s5, v71')
        a('s_lshr_b32 s5, s3, 2\ns_lshl_b32 s6, s9, 1\ns_add_u32 s5, s5, s6\ns_lshl_b32 s5, s5, 3\nv_lshlrev_b32 v5, 7, v71')
        a('s_mov_b64 exec, 0xffff\nbuffer_store_dwordx2 v[8:9], v5, s[60:63], s5 offen sc0 sc1\ns_mov_b64 exec, -1')
    def mid2():
        a('s_lshl_b32 s7, s9, 3\ns_add_u32 s7, s7, s3'); flagst(a, CE, 8, 7)
    steps = []
    for s in range(32):
        c = s >> 1; ks = s & 1
        def reads(b, s=s, c=c, ks=ks):
            st = s & 15
            L = ['ds_read_b128 v[%d:%d], v%d offset:%d' % (BUF[b], BUF[b]+3, 64+(st & 3), (st >> 2)*4096+(st & 3)*1024)]
            sl = c % NS
            for t in range(4):
                for h in range(2):
                    d = BUF[b]+4+t*4+2*h
                    L.append('ds_read_b64_tr_b16 v[%d:%d], v%d offset:%d' % (d, d+1, 68+sl//3, (sl % 3)*14336+ks*7168+h*1792+t*32))
            return L
        def mf(b, s=s): return [m16(Z[s >> 4]+4*t, BUF[b]+4+t*4, BUF[b]) for t in range(4)]
        def post(s=s):
            if s == 15: mid(); vm.issue('st')
            if s == 22: mid2()
        def iss(c=c): return issueL(c-2+NS) if c >= 2 and not os.environ.get('ENODMA') else []
        def nv(c=c):
            return vm.wait(lambda t: (t == 'st' and c >= 12) or (t != 'st' and t <= c))
        steps.append(dict(sync=(nv, iss) if ks == 0 else None, reads=reads if not os.environ.get('ENORD') else (lambda b: []), mfma=mf, post=post if not os.environ.get('ENOPOST') else None))
    pipeline2(a, steps, la=2)
    stamp(a, 8); stc(a, 'E', 1)
    for r in range(16): gelu(a, 88+r, 8+(r & 1), 70)
    for r in range(8): a('v_cvt_pk_bf16_f32 v%d, v%d, v%d' % (112+r, 88+2*r, 89+2*r))
    poll(a, CE, 8, 64)
    a('s_barrier')
    stamp(a, 9)
    srd(a, 48, 'ws', WS_Z2N, 2048*1792)
    a('v_lshrrev_b32 v5, 4, v1\nv_lshlrev_b32 v5, 5, v5\nv_lshl_add_u32 v5, v71, 7, v5')
    a('buffer_load_dwordx4 v[8:11], v5, s[60:63], 0 offen sc0 sc1\nbuffer_load_dwordx4 v[12:15], v5, s[60:63], 0 offen offset:16 sc0 sc1')
    pair_col_addr(a, 16)
    a('v_and_b32 v5, 0xfffffff3, v71\nv_bfe_u32 v6, v71, 3, 1\nv_lshl_or_b32 v5, v6, 2, v5\nv_bfe_u32 v6, v71, 2, 1\nv_lshl_or_b32 v5, v6, 3, v5')
    a('v_mul_u32_u24 v5, 224, v5\nv_add_u32 v16, v16, v5\ns_mul_i32 s14, s9, %d' % (2048*224))
    a('s_waitcnt vmcnt(0)\nv_add_f32 v8, v8, v10\nv_add_f32 v9, v9, v11\nv_add_f32 v12, v12, v14\nv_add_f32 v13, v13, v15\nv_add_f32 v8, v8, v12\nv_add_f32 v9, v9, v13')
    for r in (8, 9): red_xor16(a, r, 6)
    for r in (8, 9): red_xor32(a, r, 6)
    a('v_mul_f32 v8, %s, v8\nv_mul_f32 v9, %s, v9\nv_fma_f32 v9, -v8, v8, v9\nv_max_f32 v9, 0, v9\nv_add_f32 v9, %s, v9\nv_rsq_f32 v9, v9\ns_nop 0\nv_mul_f32 v8, v8, v9\nv_sub_f32 v8, 0, v8' % (fbits(1/896), fbits(1/896), fbits(1e-5)))
    for r in range(16): a('v_fma_f32 v%d, v%d, v9, v8' % (72+r, 72+r))
    for r in range(8): a('v_cvt_pk_bf16_f32 v%d, v%d, v%d' % (104+r, 72+2*r, 73+2*r))
    store_pairs(a, 104, 16, 48, 's14', SC)
    a('v_mov_b32 v120, v71')
    publish(a, CZ, 9, 20, 8)

def phaseF(a):
    srd(a, 48, 'ws', WS_Z2N, 2048*1792); srd(a, 56, 'bsp', 0, 4096); srd(a, 60, 'ws', WS_U, 2048*1792)
    NS = 5
    vm = VM()
    a('s_lshr_b32 s5, s3, 1\ns_mul_i32 s15, s5, %d\ns_mul_i32 s14, s5, 7168\ns_and_b32 s6, s3, 1\ns_lshl_b32 s6, s6, 12\ns_add_u32 s15, s15, s6\ns_add_u32 s14, s14, s6\ns_mul_i32 s6, s9, %d\ns_add_u32 s15, s15, s6\ns_and_b32 s6, s3, 1\ns_sub_u32 s10, s6, 1\ns_mov_b32 s11, s10' % (512*224, 2048*224))
    a('v_lshlrev_b32 v121, 1, v120\nbuffer_load_ushort v121, v121, s[56:59], 0 offen')
    poll(a, CZ, 9, 32)
    a('s_barrier')
    stamp(a, 10); stc(a, 'F', 0)
    a('s_lshl_b32 s7, s91, 1\ns_mul_i32 s7, s7, 7168\ns_add_u32 s7, s7, s15\ns_add_u32 s13, s15, %d' % (16*7168))
    def issueL(c):
        L = []
        if c > 15: return L
        for j in range(4):
            x = ''
            if j == 0: x += 's_lshl_b32 s7, s91, 1\ns_add_u32 s7, s7, %d\ns_and_b32 s7, s7, 15\ns_mul_i32 s7, s7, 7168\ns_add_u32 s7, s7, s15\n' % c
            x += 's_add_u32 s5, s7, %d\ns_add_u32 s6, s14, %d\n' % (j*1024, (c % NS)*28672+j*1024)
            if j == 3: x += 's_mov_b64 exec, s[10:11]\n'
            x += dmas(2, 48, 's5', 's6', LSC)
            if j == 3: x += '\ns_mov_b64 exec, -1'
            if j == 0: x += 's_add_u32 m0, s14, %d\ns_nop 0\n' % ((c % NS)*28672)
            if j == 3: x += 's_mov_b32 exec_hi, 0\n'
            x += 'buffer_load_dwordx4 v2, s[48:51], s7 offen offset:%d%s lds' % (j*1024, LSC)
            if j == 3: x += '\ns_mov_b32 exec_hi, -1\ns_add_u32 s7, s7, 7168\ns_cmp_eq_u32 s7, s13\ns_cselect_b32 s7, s15, s7'
            L.append(x); vm.issue(c)
        return L
    def issue(c):
        for x in issueL(c): a(x)
    for c in range(NS): issue(c)
    a('v_lshrrev_b32 v5, 5, v1\nv_lshlrev_b32 v5, 4, v5\nv_bfe_u32 v6, v1, 4, 1\nv_lshl_add_u32 v5, v6, 2, v5\nv_bfe_u32 v6, v1, 2, 2\nv_add_u32 v5, v5, v6\nv_mul_u32_u24 v5, 224, v5')
    a('v_and_b32 v6, 3, v1\nv_lshl_add_u32 v5, v6, 3, v5\ns_and_b32 s5, s3, 1\ns_lshr_b32 s6, s3, 2\ns_lshl_b32 s6, s6, 1\ns_or_b32 s4, s5, s6\ns_mul_i32 s5, s4, 7168\nv_add_u32 v122, s5, v5\nv_add_u32 v123, %d, v122\nv_add_u32 v124, %d, v122' % (2*28672, 4*28672))
    ACC = 8
    for r in range(56): a('v_mov_b32 v%d, 0' % (ACC+r))
    BUF = [64, 92]
    a('v_lshlrev_b32 v5, 1, v2\ns_lshl_b32 s5, s3, 11\ns_add_u32 s5, s5, %d\nv_add_u32 v125, s5, v5\nds_write_b128 v125, v[112:115]\nds_write_b128 v125, v[116:119] offset:16' % (143360))
    steps = []
    for c in range(16):
        def reads(b, c=c):
            sl = c % NS; L = []
            for t in range(7):
                for h in range(2):
                    d = BUF[b]+4*t+2*h
                    L.append('ds_read_b64_tr_b16 v[%d:%d], v%d offset:%d' % (d, d+1, 122+sl//2, (sl % 2)*28672+h*1792+t*32))
            return L
        def mf(b, c=c): return [m16(ACC+(rt*7+t)*4, BUF[b]+4*t, 128+(rt*16+c)*4) for t in range(7) for rt in range(2)]
        def iss(c=c): return issueL(c-1+NS) if c >= 1 and not os.environ.get('FNODMA') else []
        steps.append(dict(sync=((lambda c=c: vm.wait(lambda t: t <= c)), iss), reads=reads if not os.environ.get('FNORD') else (lambda b: []), mfma=mf))
    pipeline2(a, steps, la=1, npre=2, rpg=2, ipos=eval(os.environ.get("IPOS", "[1, 5, 9, 12]")))
    stamp(a, 11); stc(a, 'F', 1)
    if os.environ.get('FREP'):
        a('s_barrier'); stc(a, 'R', 0)
        vm = VM()
        for c in range(NS): issue(c)
        if os.environ.get('FREP') == '2': pipeline2(a, steps, la=1, npre=2, rpg=2, ipos=eval(os.environ.get("IPOS", "[1, 5, 9, 12]")))
        else:
            for c in range(16):
                a('s_waitcnt vmcnt(%d)\ns_barrier' % vm.wait(lambda t: t <= c))
                if c >= 1: issue(c-1+NS)
        stc(a, 'R', 1)
    a('s_barrier\ns_mul_i32 s5, s4, %d\ns_bfe_u32 s6, s3, 0x10001\ns_mul_i32 s6, s6, %d\ns_add_u32 s5, s5, s6\nv_add_u32 v5, s5, v2' % (28*1024, 14*1024))
    for j in range(14): a('ds_write_b128 v5, v[%d:%d] offset:%d' % (ACC+4*j, ACC+4*j+3, j*1024))
    a('ds_read_b128 v[112:115], v125\nds_read_b128 v[116:119], v125 offset:16')
    a('s_waitcnt lgkmcnt(0)\ns_barrier')
    a('s_and_b32 s5, s3, 3\ns_mul_i32 s5, s5, %d\ns_lshr_b32 s6, s3, 2\ns_lshl_b32 s6, s6, 12\ns_add_u32 s5, s5, s6\nv_add_u32 v5, s5, v2\nv_add_u32 v6, %d, v5' % (7*1024, 2*28*1024))
    for kq in range(4):
        for j in range(4):
            d = 128+(kq*4+j)*4
            a('ds_read_b128 v[%d:%d], v%d offset:%d' % (d, d+3, 5+(kq >> 1), (kq & 1)*28*1024+j*1024))
    pair_col_addr(a, 16)
    a('v_mul_u32_u24 v5, 1792, v120\nv_add_u32 v16, v16, v5\ns_mul_i32 s14, s9, 224\ns_waitcnt lgkmcnt(0)\ns_barrier')
    a('v_lshlrev_b32 v121, 16, v121')
    for r in range(16):
        a('v_add_f32 v%d, v%d, v%d\nv_add_f32 v%d, v%d, v%d\nv_add_f32 v%d, v%d, v%d' % (128+r, 128+r, 144+r, 160+r, 160+r, 176+r, 128+r, 128+r, 160+r))
    for r in range(16):
        rnd_bf16(a, 128+r); a('v_add_f32 v%d, v%d, v121' % (128+r, 128+r)); rnd_bf16(a, 128+r)
    for q in range(8):
        unpack(a, 6, 7, 112+q)
        a('v_mul_f32 v6, v6, v%d\nv_mul_f32 v7, v7, v%d\nv_cvt_pk_bf16_f32 v%d, v6, v7' % (128+2*q, 129+2*q, 112+q))
    store_pairs(a, 112, 16, 60, 's14', SC)
    publish(a, CF, 8, 22, 9)

def phaseG(a):
    srd(a, 44, 'ws', WS_X1, 2*MB); srd(a, 48, 'ws', WS_U, 2048*1792); srd(a, 52, 'ws', WS_MOD, 6*2048); srd(a, 60, 'out', 0, 2*MB)
    NS = 3
    vm = VM()
    rowA_dma_addr(a, 28, 1792)
    a('s_mul_i32 s10, s8, %d\ns_lshl_b32 s12, s3, 11' % (64*1792))
    resid_epilogue(a, 32, 44, 60, 52, 5*2048, 64, False)
    srd(a, 56, 'wout', 0, 896*1024)
    wpanel_dma_addr(a, 24, 1024, 'nat')
    a('s_lshl_b32 s11, s3, 10')
    def issueW():
        for c in range(14):
            a('s_mov_b32 s5, %d\ns_add_u32 s6, s11, %d' % (c*64*1024, 49152+c*8192)); dma(a, 24, 56, 's5', 's6')
    l1 = a.uniq('gw'); l2 = a.uniq('gw')
    a('s_cmp_eq_u32 s3, 0\ns_cbranch_scc1 %s' % l1); issueW(); a('s_branch %s' % l2)
    a.label(l1); poll(a, CF, 8, 8); issueW(); a.label(l2)
    a('s_barrier')
    stamp(a, 12); stc(a, 'G', 0)
    def issueL(c):
        L = []
        if c > 6: return L
        for j in range(2):
            L.append('s_add_u32 s5, s10, %d\ns_add_u32 s6, s12, %d\n' % (c*256, (c % NS)*16384+j*1024) + dmas(28+j, 48, 's5', 's6', LSC)); vm.issue(c)
        return L
    def issue(c):
        for x in issueL(c): a(x)
    for c in range(NS): issue(c)
    wpanel_rd_addr(a, 25, 'nat', 49152)
    a('v_add_u32 v30, 0xe000, v25\nv_add_u32 v31, 0xe000, v26')
    a('v_and_b32 v5, 15, v1\nv_lshrrev_b32 v6, 4, v1\nv_xor_b32 v6, v5, v6\nv_lshlrev_b32 v6, 4, v6\nv_lshl_add_u32 v6, v5, 8, v6\ns_and_b32 s5, s3, 3\ns_lshl_b32 s5, s5, 12\nv_add_u32 v6, s5, v6')
    for ks in range(4): a('v_xor_b32 v%d, %d, v6' % (88+ks, ks << 6))
    ACC = 32
    for r in range(8): a('v_mov_b32 v%d, 0' % (ACC+r))
    BUF = [40, 64, 96]
    steps = []
    for s in range(14):
        c = s >> 1
        def reads(b, s=s, c=c):
            L = []
            for k in range(2):
                st = 2*s+k
                L.append('ds_read_b128 v[%d:%d], v%d offset:%d' % (BUF[b]+4*k, BUF[b]+4*k+3, 88+(st & 3), (c % NS)*16384))
                for t in range(2):
                    for h in range(2):
                        d = BUF[b]+8+k*8+t*4+2*h
                        L.append('ds_read_b64_tr_b16 v[%d:%d], v%d offset:%d' % (d, d+1, (25 if st < 14 else 30)+t, (st % 14)*4096+h*512))
            return L
        def mf(b): return [m16(ACC+4*t, BUF[b]+8+k*8+t*4, BUF[b]+4*k) for k in range(2) for t in range(2)]
        def iss(c=c): return issueL(c-1+NS) if c >= 1 else []
        steps.append(dict(sync=((lambda c=c: vm.wait(lambda t: t <= c)), iss) if s % 2 == 0 else None, reads=reads, mfma=mf))
    pipeline2(a, steps, la=1)
    stamp(a, 13); stc(a, 'G', 1)
    resid_finish(a, ACC, 60, 64, False)

def kmain(a):
    prologue(a, 256)
    wgmap(a, 8, 9)
    a('s_and_b32 s4, s2, 7\ns_lshl_b32 s4, s4, 2\ns_bfe_u32 s5, s2, 0x20003\ns_add_u32 s88, s4, s5\ns_lshr_b32 s89, s2, 5')
    srd(a, SRD_FLAG, 'ws', WS_FLAG, 0x8000)
    attn(a); phaseD(a); phaseE(a); phaseF(a); phaseG(a)
    stamp(a, 14); stamp_rt(a, 15)
    a('s_endpgm')
```

```python
import os
from gen4 import *
import gen4
CQ = 112
def red16vals(a, V, T):
    for j in range(8): a('v_permlane32_swap_b32 v%d, v%d' % (V+j, V+j+8))
    for j in range(8): a('v_add_f32 v%d, v%d, v%d' % (V+j, V+j, V+j+8))
    for j in range(4): a('v_permlane16_swap_b32 v%d, v%d' % (V+j, V+j+4))
    for j in range(4): a('v_add_f32 v%d, v%d, v%d' % (T+j, V+j, V+j+4))
    for m in (QP1, QP2, 'row_half_mirror', 'row_mirror'):
        for j in range(4): dpp_add(a, T+j, m)
def front(a):
    srd(a, 44, 'x', 0, 2*MB); srd(a, 52, 'ws', WS_MOD, 6*2048); srd(a, 56, 'wqkv', 0, 512*3072); srd(a, 48, 'dbg', 0, 256)
    RING = 65536; SLOT = 24576; XR = 16
    a('s_lshl_b32 s10, s8, 6\nv_lshlrev_b32 v2, 4, v1')
    a('v_lshrrev_b32 v5, 3, v1\ns_lshl_b32 s5, s3, 3\nv_add_u32 v5, s5, v5\nv_mul_u32_u24 v64, 3072, v5')
    a('v_bfe_u32 v5, v1, 4, 1\ns_and_b32 s5, s3, 1\ns_lshl_b32 s5, s5, 1\nv_or_b32 v5, s5, v5\nv_lshlrev_b32 v5, 1, v5\nv_and_b32 v6, 7, v1\nv_xor_b32 v5, v5, v6\nv_lshl_add_u32 v64, v5, 4, v64')
    SK, SV = int(os.environ.get('SK', 4)), int(os.environ.get('SV', 4))
    a('s_lshl_b32 s14, s9, 7\ns_add_u32 s15, s9, %d\ns_and_b32 s15, s15, 7\ns_lshl_b32 s15, s15, 7\ns_add_u32 s42, s9, %d\ns_and_b32 s42, s42, 7\ns_lshl_b32 s42, s42, 7\ns_lshl_b32 s11, s3, 10\ns_add_u32 s11, s11, %d' % (SK, SV, RING))
    GO = (14, 15, 42)
    def issueL(c):
        L = []
        if c > 7: return L
        for p in range(3):
            x = 's_add_u32 m0, s11, %d\ns_add_u32 s5, s%d, %d\n' % ((c % 4)*SLOT + p*8192, GO[p], c*64*3072 + p*1024)
            L.append(x + 'buffer_load_dwordx4 v64, s[56:59], s5 offen lds')
        return L
    def prefetch():
        a('s_lshl_b32 s5, s3, 3\ns_add_u32 s5, s5, s10\ns_lshl_b32 s6, s5, 10\ns_add_u32 s7, s6, 4096')
        for i in range(8):
            a('buffer_load_dwordx4 v[%d:%d], v2, s[44:47], s%d offen offset:%d' % (XR+4*i, XR+4*i+3, 6 if i < 4 else 7, (i & 3)*1024))
        for c in range(3):
            for x in issueL(c): a(x)
    a('s_cmp_lt_u32 s2, 96\ns_cbranch_scc0 fr_nomod')
    D0, C0, A0 = 128, 160, 168
    srd(a, 60, 'wmod', 0, 512*6144); srd(a, 64, 'c', 0, 1024)
    a('v_lshrrev_b32 v7, 2, v0\nv_and_b32 v10, 3, v0\nv_mul_u32_u24 v4, 6144, v7\nv_lshl_add_u32 v4, v10, 4, v4\nv_lshlrev_b32 v5, 1, v7\ns_lshl_b32 s4, s2, 6')
    l = a.uniq('z')
    a('s_cmp_lt_u32 s2, 32\ns_cbranch_scc0 %s\ns_cmp_lt_u32 s3, 4\ns_cbranch_scc0 %s' % (l, l))
    a('s_lshl_b32 s5, s2, 10\nv_lshlrev_b32 v8, 2, v0\nv_mov_b32 v9, 0\nbuffer_store_dword v9, v8, s[84:87], s5 offen sc1'); a.label(l)
    for i in range(4): a('buffer_load_ushort v%d, v5, s[64:67], 0 offen offset:%d' % (C0+i, i*256))
    for i in range(4):
        a('s_add_u32 s5, s4, %d\nbuffer_load_dwordx4 v[%d:%d], v4, s[60:63], s5 offen' % (i*128*6144, D0+4*i, D0+4*i+3))
    prefetch()
    a('s_waitcnt vmcnt(21)')
    for i in range(4): a('v_lshlrev_b32 v%d, 16, v%d' % (C0+i, C0+i))
    for i in range(4): a('v_mul_f32 v%d, %s, v%d' % (176+i, fbits(-1.4426950408889634), C0+i))
    for i in range(4): a('v_exp_f32 v%d, v%d' % (176+i, 176+i))
    for i in range(4): a('v_add_f32 v%d, 1.0, v%d' % (176+i, 176+i))
    for i in range(4): a('v_rcp_f32 v%d, v%d' % (176+i, 176+i))
    for i in range(4): a('v_mul_f32 v%d, v%d, v%d' % (C0+i, C0+i, 176+i))
    for i in range(4): rnd_bf16(a, C0+i)
    for e in range(8): a('v_mov_b32 v%d, 0' % (A0+e))
    a('s_waitcnt vmcnt(17)')
    for i in range(4):
        for q in range(4):
            unpack(a, 6+2*(q & 1), 7+2*(q & 1), D0+4*i+q)
            a('v_fmac_f32 v%d, v%d, v%d\nv_fmac_f32 v%d, v%d, v%d' % (A0+2*q, 6+2*(q & 1), C0+i, A0+2*q+1, 7+2*(q & 1), C0+i))
    for j in range(4): a('v_permlane32_swap_b32 v%d, v%d' % (A0+j, A0+j+4))
    for j in range(4): a('v_add_f32 v%d, v%d, v%d' % (A0+j, A0+j, A0+j+4))
    a('s_nop 1')
    for j in range(2): a('v_permlane16_swap_b32 v%d, v%d' % (A0+j, A0+j+2))
    a('s_nop 1')
    for j in range(2): a('v_add_f32 v%d, v%d, v%d' % (A0+j, A0+j, A0+j+2))
    a('s_nop 1')
    for m in ('row_ror:4', 'row_ror:8'):
        for j in range(2): dpp_add(a, A0+j, m)
        a('s_nop 1')
    a('v_lshlrev_b32 v6, 5, v10\nv_bfe_u32 v7, v1, 4, 1\nv_lshl_add_u32 v6, v7, 3, v6\nv_lshrrev_b32 v7, 5, v1\nv_lshl_add_u32 v6, v7, 4, v6\ns_lshl_b32 s5, s3, 7\nv_add_u32 v6, s5, v6\ns_mov_b32 s12, 0x000f000f\ns_mov_b32 s13, 0x000f000f\ns_mov_b64 exec, s[12:13]')
    a('ds_write_b64 v6, v[%d:%d]\ns_mov_b64 exec, -1\ns_waitcnt lgkmcnt(0)\ns_barrier' % (A0, A0+1))
    stamp(a, 34)
    a('s_cmp_eq_u32 s3, 0\ns_cbranch_scc0 fr_mod_done')
    a('v_lshlrev_b32 v6, 2, v1\ns_mov_b32 s12, -1\ns_mov_b32 s13, 0\ns_mov_b64 exec, s[12:13]')
    for i in range(8): a('ds_read_b32 v%d, v6 offset:%d' % (C0+i, i*128))
    a('s_waitcnt lgkmcnt(0)')
    for i in range(4): a('v_add_f32 v%d, v%d, v%d' % (C0+i, C0+i, C0+4+i))
    a('v_add_f32 v%d, v%d, v%d\nv_add_f32 v%d, v%d, v%d\nv_add_f32 v%d, v%d, v%d' % (C0, C0, C0+1, C0+2, C0+2, C0+3, C0, C0, C0+2))
    rnd_bf16(a, C0)
    a('s_lshr_b32 s5, s2, 4\ns_cmp_eq_u32 s5, 1\ns_cbranch_scc1 fr_p1\ns_cmp_eq_u32 s5, 4\ns_cbranch_scc0 fr_st')
    a.label('fr_p1'); a('v_add_f32 v%d, 1.0, v%d' % (C0, C0)); rnd_bf16(a, C0)
    a.label('fr_st')
    a('s_lshl_b32 s5, s2, 7\nbuffer_store_dword v%d, v6, s[52:55], s5 offen sc1\ns_cmp_lt_u32 s2, 32\ns_cbranch_scc0 fr_nf\ns_waitcnt vmcnt(0)' % C0)
    a('s_lshl_b32 s5, s2, 2\nv_mov_b32 v6, 1\ns_mov_b64 exec, 1\nbuffer_store_dword v6, off, s[48:51], s5 sc1')
    a.label('fr_nf'); a('s_mov_b64 exec, -1')
    stamp(a, 35)
    a.label('fr_mod_done')
    a('s_branch fr_join')
    a.label('fr_nomod')
    prefetch()
    a.label('fr_join')
    srd(a, 60, 'win', 0, 512*3584)
    a('s_sub_u32 s4, s2, 96\ns_lshl_b32 s4, s4, 9\ns_cmp_lt_u32 s2, 224\ns_cselect_b32 s4, s4, 0x40000000\nv_add_u32 v106, s4, v0\ns_mov_b32 s5, 0x24924925')
    n = 106
    for ps in range(2):
        if ps: a('v_add_u32 v106, 0x10000, v106')
        b = 96+4*ps
        a('v_lshrrev_b32 v3, 1, v%d\nv_mul_hi_u32 v3, v3, s5' % n)
        a('v_mul_u32_u24 v4, 14, v3\nv_sub_u32 v4, v%d, v4' % n)
        a('v_and_b32 v5, 511, v3')
        a('v_lshrrev_b32 v6, 1, v5\nv_and_b32 v6, 4, v6\nv_lshlrev_b32 v7, 1, v5\nv_and_b32 v7, 8, v7\nv_and_b32 v5, 0x1f3, v5\nv_or3_b32 v5, v5, v6, v7')
        a('v_bfe_u32 v6, v3, 9, 1\nv_xor_b32 v6, 1, v6\nv_mul_u32_u24 v6, 1792, v6')
        a('v_lshrrev_b32 v7, 10, v3\nv_mul_u32_u24 v7, 224, v7')
        a('v_mul_u32_u24 v5, 3584, v5\nv_add3_u32 v5, v5, v6, v7\nv_lshl_add_u32 v5, v4, 4, v5')
        a('v_cmp_gt_u32 vcc, 114688, v%d\nv_mov_b32 v6, 0x7fffffff\nv_lshlrev_b32 v7, 4, v%d\nv_cndmask_b32 v5, v6, v5, vcc\nv_cndmask_b32 v%d, v6, v7, vcc' % (n, n, 104+ps))
        a('buffer_load_dwordx4 v[%d:%d], v5, s[60:63], 0 offen' % (b, b+3))
    stamp(a, 27)
    V = 128; T = 144
    a('s_waitcnt vmcnt(11)')
    for i in range(8):
        for q in range(4):
            lo, hi = 6+2*(q & 1), 7+2*(q & 1)
            unpack(a, lo, hi, XR+4*i+q)
            if q == 0: a('v_add_f32 v%d, v%d, v%d\nv_mul_f32 v%d, v%d, v%d\nv_fmac_f32 v%d, v%d, v%d' % (V+i, lo, hi, V+8+i, lo, lo, V+8+i, hi, hi))
            else: a('v_add_f32 v%d, v%d, v%d\nv_fmac_f32 v%d, v%d, v%d\nv_add_f32 v%d, v%d, v%d\nv_fmac_f32 v%d, v%d, v%d' % (V+i, V+i, lo, V+8+i, lo, lo, V+i, V+i, hi, V+8+i, hi, hi))
    red16vals(a, V, T)
    for j in range(4): a('v_mov_b32 v%d, v%d' % (T+4+j, T+j))
    for j in range(4): a('v_permlane32_swap_b32 v%d, v%d' % (T+j, T+4+j))
    for j in range(4): a('v_mul_f32 v%d, %s, v%d\nv_mul_f32 v%d, %s, v%d' % (T+j, fbits(1/512), T+j, T+4+j, fbits(1/512), T+4+j))
    for j in range(4): a('v_fma_f32 v%d, -v%d, v%d, v%d' % (T+4+j, T+j, T+j, T+4+j))
    for j in range(4): a('v_max_f32 v%d, 0, v%d' % (T+4+j, T+4+j))
    for j in range(4): a('v_add_f32 v%d, %s, v%d' % (T+4+j, fbits(1e-5), T+4+j))
    for j in range(4): a('v_rsq_f32 v%d, v%d' % (T+4+j, T+4+j))
    for j in range(4): a('v_mul_f32 v%d, v%d, v%d' % (T+j, T+j, T+4+j))
    for j in range(4): a('v_sub_f32 v%d, 0, v%d' % (T+j, T+j))
    for i in range(8):
        a('v_readlane_b32 s%d, v%d, %d\nv_readlane_b32 s%d, v%d, %d' % (68+2*i, T+4+(i & 3), 16*(i >> 2), 69+2*i, T+(i & 3), 16*(i >> 2)))
    XH = 160
    for i in range(8):
        a('v_mov_b32 v5, s%d' % (69+2*i))
        for q in range(4):
            r = XH+8*i+2*q
            unpack(a, r, r+1, XR+4*i+q)
            a('v_fma_f32 v%d, v%d, s%d, v5\nv_fma_f32 v%d, v%d, s%d, v5' % (r, r, 68+2*i, r+1, r+1, 68+2*i))
    a('v_lshrrev_b32 v4, 2, v1\nv_lshlrev_b32 v4, 10, v4\nv_and_b32 v5, 3, v1\nv_lshl_add_u32 v4, v5, 8, v4\nv_and_b32 v5, 15, v1\nv_lshl_add_u32 v4, v5, 4, v4')
    a('s_lshr_b32 s5, s3, 1\ns_lshl_b32 s5, s5, 14\ns_and_b32 s6, s3, 1\ns_lshl_b32 s6, s6, 7\nv_xor_b32 v4, s6, v4\nv_add_u32 v13, s5, v4')
    l = a.uniq('mp'); d = a.uniq('md')
    a('s_cmp_eq_u32 s3, 0\ns_cbranch_scc0 %s' % d)
    a('v_lshlrev_b32 v6, 2, v1\ns_mov_b32 s6, 0\ns_mov_b32 s12, -1\ns_mov_b32 s13, 0\ns_mov_b64 exec, s[12:13]')
    a.label(l)
    a('buffer_load_dword v5, v6, s[48:51], 0 offen sc1\ns_waitcnt vmcnt(0)\nv_cmp_ne_u32 vcc, 0, v5\ns_add_u32 s6, s6, 1\ns_cmp_gt_u32 s6, 0x20000\ns_cbranch_scc1 %s_x\ns_cmp_eq_u64 vcc, exec\ns_cbranch_scc1 %s_x\ns_sleep %s\ns_branch %s' % (l, l, os.environ.get('SLP', '2'), l))
    a.label(l+'_x'); a('s_mov_b64 exec, -1')
    a.label(d)
    a('s_barrier')
    stamp(a, 28)
    a('v_lshlrev_b32 v3, 5, v1')
    for (dd, off) in ((48, 1*2048), (56, 0)):
        a('s_mov_b32 s5, %d' % off)
        for h in range(2): a('buffer_load_dwordx4 v[%d:%d], v3, s[52:55], s5 offen offset:%d sc1' % (dd+4*h, dd+4*h+3, 16*h))
    a('s_waitcnt vmcnt(0)')
    for i in range(8):
        for q in range(4):
            r = XH+8*i+2*q
            a('v_fma_f32 v%d, v%d, v%d, v%d\nv_fma_f32 v%d, v%d, v%d, v%d' % (r, r, 48+2*q, 56+2*q, r+1, r+1, 49+2*q, 57+2*q))
        for q in range(4): a('v_cvt_pk_bf16_f32 v%d, v%d, v%d' % (XR+4*i+q, XH+8*i+2*q, XH+8*i+2*q+1))
        a('v_xor_b32 v12, %d, v13\nds_write_b128 v12, v[%d:%d]' % (i << 4, XR+4*i, XR+4*i+3))
    stamp(a, 29)
    a('s_and_b32 s5, s3, 1\ns_lshl_b32 s5, s5, 15')
    afrag_addrs(a, 65, 5)
    a('v_lshrrev_b32 v5, 4, v1\nv_bfe_u32 v6, v1, 2, 2\nv_lshl_add_u32 v7, v5, 3, v6\nv_lshlrev_b32 v7, 7, v7')
    a('v_bfe_u32 v6, v1, 3, 1\nv_and_b32 v5, 1, v5\nv_lshl_or_b32 v5, v5, 1, v6\ns_lshr_b32 s5, s3, 1\nv_xor_b32 v5, s5, v5\nv_lshl_add_u32 v7, v5, 5, v7')
    a('v_and_b32 v5, 3, v1\nv_lshl_add_u32 v7, v5, 3, v7\nv_add_u32 v69, %d, v7\nv_add_u32 v70, %d, v7' % (RING, RING+2*SLOT))
    ACC = 72
    for r in range(24): a('v_mov_b32 v%d, 0' % (ACC+r))
    BUF = [128, 148, 168]
    vm = VM()
    for c in range(3):
        for p in range(3): vm.issue(c)
    for h in range(6): vm.issue(-1)
    steps = []
    for st in range(16):
        c = st >> 1; ks = st & 1
        def reads(b, st=st, c=c, ks=ks):
            L = ['ds_read_b128 v[%d:%d], v%d offset:%d' % (BUF[b]+rt*4, BUF[b]+rt*4+3, 65+(st & 3), (st >> 2)*4096+(st & 3)*1024+rt*16384) for rt in range(2)]
            for p in range(3):
                for h in range(2):
                    d_ = BUF[b]+8+p*4+2*h
                    L.append('ds_read_b64_tr_b16 v[%d:%d], v%d offset:%d' % (d_, d_+1, 69+((c % 4) >> 1), (c & 1)*SLOT+p*8192+ks*4096+h*512))
            return L
        def mf(b):
            L = []
            for p in range(3):
                for rt in range(2):
                    A_ = BUF[b]+rt*4; B_ = BUF[b]+8+p*4; D_ = ACC+p*8+rt*4
                    L.append(m16(D_, B_, A_) if p < 2 else m16(D_, A_, B_))
            return L
        def iss(c=c):
            if c == 0 or c-2+4 > 7: return []
            if c == 1: L = issueL(3); cc = 3
            else: cc = c+2; L = issueL(cc)
            for p in range(3): vm.issue(cc)
            return L
        steps.append(dict(sync=((lambda c=c: vm.wait(lambda t: t <= c)), iss) if ks == 0 else None, reads=reads, mfma=mf))
    pipeline2(a, steps, la=2, npre=1, rpg=2)
    stamp(a, 30)
    srd(a, 64, 'ws', WS_WIN, 512*3584)
    a('buffer_store_dwordx4 v[96:99], v104, s[64:67], 0 offen sc1\nbuffer_store_dwordx4 v[100:103], v105, s[64:67], 0 offen sc1')
    srd(a, 60, 'ws', WS_Q, 6*MB); srd(a, 64, 'ws', WS_KMAX, 32*64*4)
    a('s_lshr_b32 s5, s3, 1\ns_lshl_b32 s5, s5, 6\ns_lshl_b32 s6, s8, 1\ns_add_u32 s5, s5, s6\ns_and_b32 s6, s3, 1\ns_add_u32 s13, s5, s6')
    a('s_lshl_b32 s7, s15, 1\ns_add_u32 s7, s7, s13\ns_lshl_b32 s7, s7, 2\nv_lshlrev_b32 v2, 4, v1')
    for r in range(8): a('v_mul_f32 v%d, %s, v%d' % (ACC+r, fbits(0.25*1.4426950408889634), ACC+r))
    for p in range(3):
        b = ACC+p*8; d_ = 16+4*p
        for r in range(4): a('v_cvt_pk_bf16_f32 v%d, v%d, v%d' % (d_+r, b+2*r, b+2*r+1))
        sw = 'v_permlane16_swap_b32' if p < 2 else 'v_permlane32_swap_b32'
        a('%s v%d, v%d\n%s v%d, v%d' % (sw, d_, d_+2, sw, d_+1, d_+3))
        a('s_lshl_b32 s4, s%d, 1\ns_add_u32 s4, s4, s13\ns_lshl_b32 s4, s4, 10' % GO[p])
        a('s_add_u32 s4, s4, %d\nbuffer_store_dwordx4 v[%d:%d], v2, s[60:63], s4 offen sc1' % (p*2*MB, d_, d_+3))
    for rt in range(2):
        k = ACC+8+rt*4
        a('v_mul_f32 v%d, v%d, v%d' % (8+rt, k, k))
        for e in range(1, 4): a('v_fmac_f32 v%d, v%d, v%d' % (8+rt, k+e, k+e))
    for rt in range(2): red_xor16(a, 8+rt, 6)
    for rt in range(2): red_xor32(a, 8+rt, 6)
    a('v_max_f32 v8, v8, v9')
    for m in (QP1, QP2, 'row_half_mirror', 'row_mirror'): dpp_add(a, 8, m, 'v_max_f32')
    a('s_mov_b64 exec, 1\nbuffer_store_dword v8, off, s[64:67], s7 sc1\ns_mov_b64 exec, -1')
    publish(a, CQ, 9, 36, 8)
    stamp(a, 38)
    for k_, sh in enumerate(sorted(set([0, SK, SV]))):
        a('s_and_b32 s74, s2, 7\ns_add_u32 s74, s74, %d\ns_and_b32 s74, s74, 7' % (8-sh))
        poll(a, CQ, 74, 32)
    a('s_barrier')
    stamp(a, 31)
def kall(a):
    prologue(a, 256)
    wgmap(a, 8, 9)
    a('s_and_b32 s4, s2, 7\ns_lshl_b32 s4, s4, 2\ns_bfe_u32 s5, s2, 0x20003\ns_add_u32 s88, s4, s5\ns_lshr_b32 s89, s2, 5')
    srd(a, SRD_FLAG, 'ws', WS_FLAG, 0x8000)
    front(a)
    attn(a); phaseD(a); phaseE(a); phaseF(a); phaseG(a)
    stamp(a, 14); stamp_rt(a, 15)
    a('s_endpgm')
```

```python
import sys
sys.path.insert(0, 'gen')
import gen
if len(sys.argv) > 2 and sys.argv[2] == 'instr': gen.INSTR = True
from gen import *
from gen5 import kall
def kmain(a):
    gen.SC = ' sc1'; kall(a); gen.SC = ''
ks = [(NAME + '_kernel', kmain, 163840, 256)]
build(ks, sys.argv[1] if len(sys.argv) > 1 else 'cdna_kernels/%s.s' % NAME)
```
